```python
import torch

def _softmax(x, axis=-1):
    return torch.softmax(x, dim=axis)

def _gelu(x):
    return torch.nn.functional.gelu(x, approximate='tanh')

def _silu(x):
    return torch.nn.functional.silu(x)

def _sigmoid(x):
    return torch.sigmoid(x)

def _layernorm(x, axis=-1, eps=1e-05):
    m = x.mean(dim=axis, keepdim=True)
    v = x.var(dim=axis, keepdim=True, unbiased=False)
    return (x - m) / torch.sqrt(v + eps)

def _scatter_add(tgt, idx, src, axis=0):
    return tgt.clone().index_add_(axis, idx, src)

def _segment_sum(src, seg, n):
    out = torch.zeros((n,) + src.shape[1:], dtype=src.dtype)
    return out.index_add_(0, seg, src)

def _pad(x, pw):
    flat = tuple((v for pair in reversed(pw) for v in pair))
    return torch.nn.functional.pad(x, flat)
kernel_name = 'adaLN_cond__softmax_full_mha__dense_activation_relu__prompt'

def setup_inputs():

    _w = lambda a: (lambda t: t.to(torch.bfloat16) if t.is_floating_point() else t)(torch.as_tensor(a))

    def _A_setup():
        B, S, D = (1, 2048, 1024)
        return {'x': _w((lambda *s: torch.randn(*s, dtype=torch.bfloat16) * 0.05)(B, S, D)), 'wqkv': _w((lambda *s: torch.randn(*s, dtype=torch.bfloat16) * 0.05)(D, 3 * D)), 'wo': _w((lambda *s: torch.randn(*s, dtype=torch.bfloat16) * 0.05)(D, D))}
    _A_in = _A_setup()

    def _B_setup():
        B, S, D, Dff = (1, 2048, 1024, 3584)
        return {'x': _w((lambda *s: torch.randn(*s, dtype=torch.bfloat16) * 0.05)(B, S, D)), 'w1': _w((lambda *s: torch.randn(*s, dtype=torch.bfloat16) * 0.05)(D, Dff)), 'w2': _w((lambda *s: torch.randn(*s, dtype=torch.bfloat16) * 0.05)(Dff, D))}
    _B_in = _B_setup()
    return {'A_x': _A_in['x'], 'A_wqkv': _A_in['wqkv'], 'A_wo': _A_in['wo'], 'B_x': _B_in['x'], 'B_w1': _B_in['w1'], 'B_w2': _B_in['w2'], 'c': _w((lambda *s: torch.randn(*s, dtype=torch.bfloat16) * 0.2)(1, 1024) * 8.0), 'w_mod': _w((lambda *s: torch.randn(*s, dtype=torch.bfloat16) * 0.2)(1024, 6 * 1024) * 1024 ** (-0.5) * 8.0)}

def reference(A_x, A_wqkv, A_wo, B_x, B_w1, B_w2, c, w_mod):

    def _A_ref(x, wqkv, wo):
        B, S, D = x.shape
        H = 32
        Dh = D // H
        qkv = (lambda x, *d: x.permute(*d))((x @ wqkv).reshape(B, S, 3, H, Dh), 2, 0, 3, 1, 4)
        q, k, v = (qkv[0], qkv[1], qkv[2])
        scale = Dh ** (-0.5)
        scores = torch.einsum('bhqd,bhkd->bhqk', q, k) * scale
        p = _softmax(scores, axis=-1)
        o = torch.einsum('bhqk,bhkd->bhqd', p, v)
        return (lambda x, *d: x.permute(*d))(o, 0, 2, 1, 3).reshape(B, S, D) @ wo

    def _B_ref(x, w1, w2):
        h = torch.einsum('bsd,df->bsf', x, w1)
        zero = torch.zeros_like(h)
        h = torch.maximum(h, zero)
        return torch.einsum('bsf,fd->bsd', h, w2)
    x = A_x
    mod = (_silu(c) @ w_mod).reshape(c.shape[0], 6, 1, -1)
    sa, ca, ga, sb, cb, gb = (mod[:, 0].clone(), mod[:, 1].clone(), mod[:, 2].clone(), mod[:, 3].clone(), mod[:, 4].clone(), mod[:, 5].clone())
    h = _layernorm(x, axis=-1) * (1 + ca) + sa
    x = x + ga * _A_ref(h, A_wqkv, A_wo)
    h = _layernorm(x, axis=-1) * (1 + cb) + sb
    x = x + gb * _B_ref(h, B_w1, B_w2)
    return x
```

```python
class K:
    WSB = 0
    def __init__(self, name, grid, block, lds=0, vgpr=256, sgpr=96, agpr=0):
        self.name = name
        self.grid = grid
        self.block = block
        self.lds = lds
        self.vgpr = vgpr
        self.sgpr = sgpr
        self.agpr = agpr
        self.lines = []
        self._lab = 0

    def __call__(self, s):
        for ln in s.strip("\n").split("\n"):
            ln = ln.strip()
            if ln:
                self.lines.append("  " + ln)

    def label(self, name):
        self.lines.append(f"{name}:")

    def newlabel(self, hint="L"):
        self._lab += 1
        return f".L{self.name}_{hint}_{self._lab}"

    def comment(self, s):
        self.lines.append(f"  ; {s}")

    def srd(self, d, base_lo, base_hi, nbytes):
        self(f"s_mov_b32 s{d}, {base_lo}")
        self(f"s_mov_b32 s{d+1}, {base_hi}")
        self(f"s_mov_b32 s{d+2}, {hex(nbytes)}")
        self(f"s_mov_b32 s{d+3}, 0x20000")

    def srd_off(self, d, base, off, nbytes):
        self(f"s_add_u32 s{d}, s{base}, {hex(off + K.WSB)}")
        self(f"s_addc_u32 s{d+1}, s{base+1}, 0")
        self(f"s_mov_b32 s{d+2}, {hex(nbytes)}")
        self(f"s_mov_b32 s{d+3}, 0x20000")

    def text(self):
        acc_off = (self.vgpr + 3) // 4 * 4
        nfv = acc_off + self.agpr if self.agpr else self.vgpr
        out = []
        out.append(f".globl {self.name}")
        out.append(".p2align 8")
        out.append(f".type {self.name},@function")
        out.append(f"{self.name}:")
        out += self.lines
        return "\n".join(out) + "\n"

    def desc(self):
        acc_off = (self.vgpr + 3) // 4 * 4
        nfv = acc_off + self.agpr if self.agpr else self.vgpr
        return f""".p2align 6
.amdhsa_kernel {self.name}
  .amdhsa_next_free_vgpr {nfv}
  .amdhsa_next_free_sgpr {self.sgpr}
  .amdhsa_accum_offset {acc_off}
  .amdhsa_group_segment_fixed_size 0
  .amdhsa_kernarg_size 88
  .amdhsa_user_sgpr_count 2
  .amdhsa_user_sgpr_kernarg_segment_ptr 1
  .amdhsa_system_sgpr_workgroup_id_x 1
.end_amdhsa_kernel
"""


def v(i, n=1):
    return f"v{i}" if n == 1 else f"v[{i}:{i+n-1}]"

def s(i, n=1):
    return f"s{i}" if n == 1 else f"s[{i}:{i+n-1}]"

def a(i, n=1):
    return f"a{i}" if n == 1 else f"a[{i}:{i+n-1}]"


HEADER = """; Kernarg layout for this problem (88 bytes, ptrs only, base s[0:1]):
"""


def assemble_file(kernels, launches):
    out = HEADER
    for k in launches:
        g = k.grid
        out += f"; @launch kernel={k.name} grid=({g},1,1) block=({k.block},1,1) lds={k.lds}\n"
    out += '.amdgcn_target "amdgcn-amd-amdhsa--gfx950"\n.text\n'
    for k in kernels:
        out += k.text()
    out += ".p2align 8\n.Ltext_end:\n"
    out += '.section .rodata,"a"\n'
    for k in kernels:
        out += k.desc()
    return out
```

```python
import sys, os
sys.path.insert(0, os.path.dirname(os.path.abspath(__file__)))
from asmlib import K, v, s, a, assemble_file

S_, D_, F_, NH = 2048, 1024, 3584, 32
KA_X, KA_WQKV, KA_WO, KA_BX, KA_W1, KA_W2, KA_C, KA_WMOD, KA_OUT, KA_DBG, KA_WS = [8 * i for i in range(11)]
WS_MODF = 0x000000
WS_MODB = 0x008000
WS_UV = 0x010000
WS_RSTD = 0x018000
WS_STATS = 0x020000
WS_H1 = 0x100000
WS_Q = 0x500000
WS_K = 0x900000
WS_V = 0xD00000
WS_O = 0x1100000
WS_X2 = 0x1500000
WS_Y2 = 0x1900000
WS_H = 0x1D00000
ACT_BYTES = S_ * D_ * 2
H_BYTES = S_ * F_ * 2
LOG2E = 1.4426950408889634
import struct
def f2i(x):
    return struct.unpack("<I", struct.pack("<f", x))[0]


def exit_guard(k, nwg):
    end = k.newlabel("end")
    k(f"s_cmp_ge_u32 s2, {nwg}")
    k(f"s_cbranch_scc1 {end}")
    return end


def gen_gemv(name, mode):
    if mode == "mod":
        ncols, nvec, wka = 6144, 1, KA_WMOD
    else:
        ncols, nvec, wka = F_, 2, KA_W1
    ld = ncols * 2
    nwg = ncols // 32
    PITCH = 272
    k = K(name, nwg, 1024, lds=nvec * 32 * PITCH, vgpr=64, sgpr=40)
    end = exit_guard(k, nwg)
    k(f"s_load_dwordx2 s[4:5], s[0:1], {wka}")
    k(f"s_load_dwordx2 s[6:7], s[0:1], {KA_C}")
    k(f"s_load_dwordx2 s[20:21], s[0:1], {KA_WS}")
    k("v_and_b32 v1, 3, v0")
    k("v_lshrrev_b32 v2, 2, v0")
    k(f"s_mov_b32 s3, {ld}")
    k("v_mul_lo_u32 v3, v2, s3")
    k("v_lshl_add_u32 v3, v1, 4, v3")
    k("s_lshl_b32 s24, s2, 6")
    k(f"s_add_u32 s25, s24, {256*ld}")
    k(f"s_add_u32 s26, s24, {512*ld}")
    k(f"s_add_u32 s27, s24, {768*ld}")
    k("s_waitcnt lgkmcnt(0)")
    k.srd(8, "s4", "s5", 1024 * ld)
    k.srd(16, "s20", "s21", 0x20000)
    for i in range(4):
        k(f"buffer_load_dwordx4 {v(8+4*i,4)}, v3, s[8:11], s{24+i} offen")
    if mode == "mod":
        k.srd(12, "s6", "s7", 2048)
        k("v_lshlrev_b32 v4, 1, v2")
        for i in range(4):
            k(f"buffer_load_ushort v{24+i}, v4, s[12:15], 0 offen offset:{512*i}")
        k("s_waitcnt vmcnt(0)")
        for i in range(4):
            k(f"v_lshlrev_b32 v{24+i}, 16, v{24+i}")
        for i in range(4):
            k(f"v_mul_f32 v{28+i}, {hex(f2i(-LOG2E))}, v{24+i}")
        for i in range(4):
            k(f"v_exp_f32 v{28+i}, v{28+i}")
        k("s_nop 0")
        for i in range(4):
            k(f"v_add_f32 v{28+i}, 1.0, v{28+i}")
        for i in range(4):
            k(f"v_rcp_f32 v{28+i}, v{28+i}")
        k("s_nop 0")
        for i in range(4):
            k(f"v_mul_f32 v{24+i}, v{24+i}, v{28+i}")
        for i in range(4):
            k(f"v_cvt_pk_bf16_f32 v{24+i}, v{24+i}, v{24+i}")
        for i in range(4):
            k(f"v_and_b32 v{24+i}, 0xffff0000, v{24+i}")
    else:
        k("v_lshlrev_b32 v4, 2, v2")
        k(f"s_mov_b32 s28, {WS_MODF + 4096*4}")
        k(f"s_mov_b32 s29, {WS_MODF + 3072*4}")
        for i in range(4):
            k(f"buffer_load_dword v{24+i}, v4, s[16:19], s28 offen offset:{1024*i}")
        for i in range(4):
            k(f"buffer_load_dword v{28+i}, v4, s[16:19], s29 offen offset:{1024*i}")
        k("s_waitcnt vmcnt(0)")
    for i in range(4):
        for d in range(4):
            src = 8 + 4 * i + d
            k(f"v_lshlrev_b32 v48, 16, v{src}")
            k(f"v_and_b32 v49, 0xffff0000, v{src}")
            for vec in range(nvec):
                sv = 24 + 4 * vec + i
                op = "v_mul_f32" if i == 0 else "v_fmac_f32"
                k(f"{op} v{32+8*vec+2*d}, v48, v{sv}")
                k(f"{op} v{32+8*vec+2*d+1}, v49, v{sv}")
    n = 8 * nvec
    k("s_nop 1")
    for r in range(n):
        k(f"v_add_f32_dpp v{32+r}, v{32+r}, v{32+r} row_ror:4 row_mask:0xf bank_mask:0xf")
    k("s_nop 1")
    for r in range(n):
        k(f"v_add_f32_dpp v{32+r}, v{32+r}, v{32+r} row_ror:8 row_mask:0xf bank_mask:0xf")
    k("v_lshrrev_b32 v5, 4, v0")
    k("v_lshlrev_b32 v5, 2, v5")
    k(f"v_mul_u32_u24 v6, {8*PITCH}, v1")
    k("v_add_u32 v5, v5, v6")
    k("v_and_b32 v6, 12, v0")
    k("v_cmp_eq_u32 vcc, 0, v6")
    k("s_and_saveexec_b64 s[30:31], vcc")
    for r in range(n):
        vec, e = divmod(r, 8)
        k(f"ds_write_b32 v5, v{32+r} offset:{vec*32*PITCH + e*PITCH}")
    k("s_mov_b64 exec, s[30:31]")
    k("s_waitcnt lgkmcnt(0)")
    k("s_barrier")
    k("v_lshrrev_b32 v6, 6, v0")
    k("s_nop 0")
    k("v_readfirstlane_b32 s3, v6")
    k("s_nop 3")
    k(f"s_cmp_ge_u32 s3, {nvec}")
    k(f"s_cbranch_scc1 {end}")
    k("v_and_b32 v1, 31, v0")
    k("v_bfe_u32 v2, v0, 5, 1")
    k(f"v_mul_u32_u24 v5, {PITCH}, v1")
    k("v_lshl_add_u32 v5, v2, 7, v5")
    k(f"s_mul_i32 s24, s3, {32*PITCH}")
    k("v_add_u32 v5, s24, v5")
    for r in range(8):
        k(f"ds_read_b128 {v(8+4*r,4)}, v5 offset:{16*r}")
    k("s_waitcnt lgkmcnt(0)")
    w = 32
    while w > 1:
        w //= 2
        for r in range(w):
            k(f"v_add_f32 v{8+r}, v{8+r}, v{8+w+r}")
    k("v_mov_b32 v9, v8")
    k("s_nop 1")
    k("v_permlane32_swap_b32 v8, v9")
    k("s_nop 1")
    k("v_add_f32 v8, v8, v9")
    k("s_lshl_b32 s24, s2, 5")
    k("v_add_u32 v1, s24, v1")
    k("v_cmp_gt_u32 vcc, 32, v0" if nvec == 1 else "v_cmp_eq_u32 vcc, 0, v2")
    k("s_and_saveexec_b64 s[30:31], vcc")
    if mode == "mod":
        k("v_cvt_pk_bf16_f32 v8, v8, v8")
        k("v_and_b32 v8, 0xffff0000, v8")
        k("s_lshr_b32 s25, s2, 5")
        k("s_cmp_eq_u32 s25, 1")
        k("s_cselect_b32 s26, 1.0, 0")
        k("s_cmp_eq_u32 s25, 4")
        k("s_cselect_b32 s26, 1.0, s26")
        k("v_add_f32 v8, s26, v8")
        k("v_cvt_pk_bf16_f32 v9, v8, v8")
        k("v_and_b32 v8, 0xffff0000, v9")
        k("v_lshlrev_b32 v2, 2, v1")
        k("v_lshlrev_b32 v3, 1, v1")
        k(f"s_mov_b32 s27, {WS_MODB}")
        k(f"buffer_store_dword v8, v2, s[16:19], 0 offen")
        k(f"buffer_store_short v9, v3, s[16:19], s27 offen")
    else:
        k("v_lshlrev_b32 v2, 2, v1")
        k("s_lshl_b32 s27, s3, 14")
        k(f"s_add_u32 s27, s27, {WS_UV}")
        k(f"buffer_store_dword v8, v2, s[16:19], s27 offen")
    k.label(end)
    k("s_endpgm")
    return k


def row8_reduce(k, r, tmp):
    k("s_nop 1")
    k(f"v_add_f32_dpp v{r}, v{r}, v{r} row_ror:8 row_mask:0xf bank_mask:0xf")
    k(f"v_mov_b32 v{tmp}, v{r}")
    k("s_nop 1")
    k(f"v_permlane16_swap_b32 v{r}, v{tmp}")
    k("s_nop 1")
    k(f"v_add_f32 v{r}, v{r}, v{tmp}")
    k(f"v_mov_b32 v{tmp}, v{r}")
    k("s_nop 1")
    k(f"v_permlane32_swap_b32 v{r}, v{tmp}")
    k("s_nop 1")
    k(f"v_add_f32 v{r}, v{r}, v{tmp}")


def gen_ln1(name):
    k = K(name, 256, 256, lds=256, vgpr=128, sgpr=40)
    end = exit_guard(k, 256)
    k(f"s_load_dwordx2 s[4:5], s[0:1], {KA_X}")
    k(f"s_load_dwordx2 s[20:21], s[0:1], {KA_WS}")
    k("v_and_b32 v1, 7, v0")
    k("v_bfe_u32 v2, v0, 3, 3")
    k("v_lshrrev_b32 v3, 6, v0")
    k("v_lshl_add_u32 v4, v3, 5, v2")
    k("v_lshlrev_b32 v4, 4, v4")
    k("v_lshl_add_u32 v5, v1, 11, v4")
    k("s_lshl_b32 s3, s2, 14")
    k("s_waitcnt lgkmcnt(0)")
    k.srd(8, "s4", "s5", ACT_BYTES)
    k.srd_off(12, 20, WS_MODB, 6144 * 2)
    k.srd_off(16, 20, WS_H1, ACT_BYTES)
    X, SA, CA, XF = 8, 24, 40, 56
    for i in range(4):
        k(f"buffer_load_dwordx4 {v(X+4*i,4)}, v5, s[8:11], s3 offen offset:{128*i}")
    for i in range(4):
        k(f"buffer_load_dwordx4 {v(SA+4*i,4)}, v4, s[12:15], 0 offen offset:{128*i}")
    for i in range(4):
        k(f"buffer_load_dwordx4 {v(CA+4*i,4)}, v4, s[12:15], 0 offen offset:{2048+128*i}")
    k("v_lshrrev_b32 v6, 1, v2")
    k("v_lshl_add_u32 v6, v3, 4, v6")
    k("v_lshlrev_b32 v6, 12, v6")
    k("v_and_b32 v7, 1, v2")
    k("v_lshl_add_u32 v6, v7, 9, v6")
    k("v_lshl_add_u32 v6, v1, 4, v6")
    k("s_lshr_b32 s24, s2, 4")
    k("s_lshl_b32 s24, s24, 18")
    k("s_bfe_u32 s25, s2, 0x20002")
    k("s_lshl_b32 s25, s25, 10")
    k("s_add_u32 s24, s24, s25")
    k("s_and_b32 s25, s2, 3")
    k("s_lshl_b32 s25, s25, 7")
    k("s_add_u32 s24, s24, s25")
    for i in range(1, 4):
        k(f"s_add_u32 s{24+i}, s24, {16384*i}")
    k("v_lshlrev_b32 v7, 4, v1")
    k("v_lshl_add_u32 v88, v3, 2, v7")
    k("s_waitcnt vmcnt(8)")
    for d in range(16):
        k(f"v_lshlrev_b32 v{XF+2*d}, 16, v{X+d}")
        k(f"v_and_b32 v{XF+2*d+1}, 0xffff0000, v{X+d}")
    for j in range(4):
        k(f"v_add_f32 v{90+j}, v{XF+j}, v{XF+4+j}")
    for b in range(2, 8):
        for j in range(4):
            k(f"v_add_f32 v{90+j}, v{90+j}, v{XF+4*b+j}")
    k("v_add_f32 v90, v90, v91")
    k("v_add_f32 v92, v92, v93")
    k("v_add_f32 v90, v90, v92")
    row8_reduce(k, 90, 91)
    k("ds_write_b32 v88, v90")
    k("s_waitcnt lgkmcnt(0)")
    k("s_barrier")
    k("ds_read_b128 v[92:95], v7")
    k("s_waitcnt lgkmcnt(0)")
    k("v_add_f32 v92, v92, v93")
    k("v_add_f32 v94, v94, v95")
    k("v_add_f32 v92, v92, v94")
    k(f"v_mul_f32 v92, {hex(f2i(1.0/1024))}, v92")
    for e in range(32):
        k(f"v_sub_f32 v{XF+e}, v{XF+e}, v92")
    for j in range(4):
        k(f"v_mul_f32 v{96+j}, v{XF+j}, v{XF+j}")
    for b in range(1, 8):
        for j in range(4):
            k(f"v_fmac_f32 v{96+j}, v{XF+4*b+j}, v{XF+4*b+j}")
    k("v_add_f32 v96, v96, v97")
    k("v_add_f32 v98, v98, v99")
    k("v_add_f32 v90, v96, v98")
    row8_reduce(k, 90, 91)
    k("ds_write_b32 v88, v90 offset:128")
    k("s_waitcnt lgkmcnt(0)")
    k("s_barrier")
    k("ds_read_b128 v[92:95], v7 offset:128")
    k("s_waitcnt lgkmcnt(0)")
    k("v_add_f32 v92, v92, v93")
    k("v_add_f32 v94, v94, v95")
    k("v_add_f32 v92, v92, v94")
    k(f"v_mov_b32 v93, {hex(f2i(1e-5))}")
    k(f"v_fmac_f32 v93, {hex(f2i(1.0/1024))}, v92")
    k("v_rsq_f32 v93, v93")
    k("s_waitcnt vmcnt(0)")
    for d in range(16):
        k(f"v_mul_f32 v{XF+2*d}, v{XF+2*d}, v93")
        k(f"v_mul_f32 v{XF+2*d+1}, v{XF+2*d+1}, v93")
        k(f"v_lshlrev_b32 v96, 16, v{SA+d}")
        k(f"v_and_b32 v97, 0xffff0000, v{SA+d}")
        k(f"v_lshlrev_b32 v98, 16, v{CA+d}")
        k(f"v_and_b32 v99, 0xffff0000, v{CA+d}")
        k(f"v_fmac_f32 v96, v{XF+2*d}, v98")
        k(f"v_fmac_f32 v97, v{XF+2*d+1}, v99")
        k(f"v_cvt_pk_bf16_f32 v{X+d}, v96, v97")
        if d % 4 == 3:
            i = d // 4
            k(f"buffer_store_dwordx4 {v(X+4*i,4)}, v6, s[16:19], s{24+i} offen")
    k.label(end)
    k("s_endpgm")
    return k


def gen_gemm(name, kind):
    cfg = {
        "qkv": dict(Ktot=1024, NP=3, ldb=3072 * 2, wka=KA_WQKV, a_off=WS_H1, natural=True, R=4, ntn=16, xa=8, xb=4),
        "wo": dict(Ktot=1024, NP=1, ldb=1024 * 2, wka=KA_WO, a_off=WS_O, natural=False, R=6, ntn=16, xa=4, xb=8),
        "w1": dict(Ktot=1024, NP=4, ldb=F_ * 2, wka=KA_W1, a_off=WS_Y2, natural=False, R=3, ntn=14, xa=4, xb=7),
        "w2": dict(Ktot=F_, NP=1, ldb=1024 * 2, wka=KA_W2, a_off=WS_H, natural=False, R=6, ntn=16, xa=4, xb=8),
    }[kind]
    Ktot, NP, ldb, R, ntn = cfg["Ktot"], cfg["NP"], cfg["ldb"], cfg["R"], cfg["ntn"]
    natural = cfg["natural"]
    MB, NB = 2, NP
    BK = 64
    NS = Ktot // BK
    KB = Ktot // 16
    STAGE = 16384 + NP * 8192
    nwg = 16 * ntn
    a_bytes = S_ * Ktot * 2
    w_bytes = Ktot * ldb
    k = K(name, nwg, 512, lds=R * STAGE, vgpr=256, sgpr=96)
    end = exit_guard(k, nwg)
    k(f"s_load_dwordx2 s[4:5], s[0:1], {cfg['wka']}")
    k(f"s_load_dwordx2 s[6:7], s[0:1], {KA_WS}")
    if kind == "wo":
        k(f"s_load_dwordx2 s[36:37], s[0:1], {KA_X}")
    if kind == "w2":
        k(f"s_load_dwordx2 s[36:37], s[0:1], {KA_OUT}")
    xa, xb = cfg["xa"], cfg["xb"]
    gm = 16 // xa
    k("s_and_b32 s20, s2, 7")
    k("s_lshr_b32 s21, s2, 3")
    k(f"s_and_b32 s22, s20, {gm-1}")
    k(f"s_lshr_b32 s23, s20, {gm.bit_length()-1}")
    k(f"s_and_b32 s24, s21, {xa-1}")
    k(f"s_lshr_b32 s25, s21, {xa.bit_length()-1}")
    k(f"s_mul_i32 s22, s22, {xa}")
    k("s_add_u32 s22, s22, s24")
    k(f"s_mul_i32 s23, s23, {xb}")
    k("s_add_u32 s23, s23, s25")
    MI, NJ, WV = 22, 23, 24
    k("v_lshrrev_b32 v1, 6, v0")
    k("v_and_b32 v0, 63, v0")
    k(f"v_readfirstlane_b32 s{WV}, v1")
    k("s_waitcnt lgkmcnt(0)")
    k.srd_off(8, 6, cfg["a_off"], a_bytes)
    k.srd(12, "s4", "s5", w_bytes)
    loader = k.newlabel("loader")
    k(f"s_cmp_ge_u32 s{WV}, 4")
    k(f"s_cbranch_scc1 {loader}")

    WM, WN = 25, 26
    k(f"s_lshr_b32 s{WM}, s{WV}, 1")
    k(f"s_and_b32 s{WN}, s{WV}, 1")
    ACC = 0
    NACC = MB * NB * 16
    ACC = 32
    FR = ACC + NACC
    FA = lambda b, i: FR + b * (MB + NB) * 4 + i * 4
    FW = lambda b, j: FR + b * (MB + NB) * 4 + (MB + j) * 4
    EX = FR + 2 * (MB + NB) * 4
    acc = lambda i, j: ACC + (i * NB + j) * 16
    VA0, VW0, VA, VW = 2, 3, 4, 5
    k(f"s_lshl_b32 s27, s{WM}, {(MB*1024).bit_length()-1}")
    k(f"v_lshl_add_u32 v{VA0}, v0, 4, s27")
    k("v_bfe_u32 v6, v0, 2, 2")
    k("v_lshrrev_b32 v7, 5, v0")
    k(f"v_lshlrev_b32 v{VW0}, 7, v6")
    k(f"v_lshl_add_u32 v{VW0}, v7, {10 if natural else 9}, v{VW0}")
    k("v_lshrrev_b32 v8, 1, v6")
    k(f"v_xor_b32 v8, s{WN}, v8")
    k(f"v_lshl_add_u32 v{VW0}, v8, 6, v{VW0}")
    k("v_bfe_u32 v8, v0, 4, 1")
    k(f"v_lshl_add_u32 v{VW0}, v8, 5, v{VW0}")
    k("v_and_b32 v8, 3, v0")
    k(f"v_lshl_add_u32 v{VW0}, v8, 3, v{VW0}")
    k(f"v_add_u32 v{VW0}, 16384, v{VW0}")
    TOFF = 512 if natural else 1024
    k("v_and_b32 v9, 31, v0")

    k(f"s_lshl_b32 s28, s{MI}, 7")
    k(f"s_lshl_b32 s29, s{WM}, 6")
    k("s_add_u32 s28, s28, s29")
    ROW0 = 28
    k.srd(16, "s6", "s7", 0x100000)
    if kind in ("wo", "w2"):
        k(f"s_lshl_b32 s29, s{NJ}, 1")
        k(f"s_add_u32 s29, s29, s{WN}")
        NBI = 29
        k(f"s_lshl_b32 s30, s{NBI}, 7")
        k("v_lshl_add_u32 v10, v7, 4, s30")
        G = EX
        gate_off = WS_MODF + (2048 if kind == "wo" else 5120) * 4
        k(f"s_mov_b32 s31, {gate_off}")
        for q in range(4):
            k(f"buffer_load_dwordx4 {v(G+4*q,4)}, v10, s[16:19], s31 offen offset:{32*q}")
        if kind == "wo":
            CB = EX + 16
            k(f"s_mov_b32 s31, {WS_MODF + 4096*4}")
            for q in range(4):
                k(f"buffer_load_dwordx4 {v(CB+4*q,4)}, v10, s[16:19], s31 offen offset:{32*q}")
            XR = EX + 32
            k.srd(40, "s36", "s37", ACT_BYTES)
            k(f"v_add_u32 v11, s{ROW0}, v9")
            k("v_lshlrev_b32 v11, 11, v11")
            k("v_lshl_add_u32 v11, v7, 3, v11")
            k(f"s_lshl_b32 s31, s{NBI}, 6")
            k(f"s_add_u32 s32, s31, {32*2048}")
            for i in range(MB):
                for q in range(4):
                    k(f"buffer_load_dwordx2 {v(XR+8*i+2*q,2)}, v11, s[40:43], s{31+i} offen offset:{16*q}")
        else:
            XR = EX + 16
            k.srd_off(40, 6, WS_X2, ACT_BYTES)
            k(f"s_lshl_b32 s31, s{MI}, 18")
            k(f"s_lshl_b32 s32, s{NBI}, 13")
            k("s_add_u32 s31, s31, s32")
            k(f"s_lshl_b32 s32, s{WM}, 11")
            k("s_add_u32 s31, s31, s32")
            k("s_add_u32 s32, s31, 4096")
            k("v_lshlrev_b32 v11, 4, v0")
            for i in range(MB):
                for j in range(2):
                    k(f"buffer_load_dwordx4 {v(XR+8*i+4*j,4)}, v11, s[40:43], s{31+j} offen offset:{1024*i}")
            RS = EX + 32
            k(f"v_add_u32 v12, s{ROW0}, v9")
            k("v_lshlrev_b32 v12, 2, v12")
            k(f"s_mov_b32 s33, {WS_RSTD}")
            for i in range(MB):
                k(f"buffer_load_dword v{RS+i}, v12, s[16:19], s33 offen offset:{128*i}")
    if kind != "w1":
        for r in range(NACC):
            k(f"v_mov_b32 v{ACC+r}, 0")
    else:
        ST = FR
        assert ST + 64 <= 256
        k(f"v_add_u32 v10, s{ROW0}, v9")
        k("v_lshlrev_b32 v10, 3, v10")
        k("v_lshl_add_u32 v10, v7, 18, v10")
        k(f"s_mov_b32 s31, {WS_STATS}")
        for q in range(16):
            for i in range(MB):
                k(f"buffer_load_dwordx2 {v(ST+32*i+2*q,2)}, v10, s[16:19], s31 offen offset:{256*i}")
            if q < 15:
                k(f"s_add_u32 s31, s31, {2048*8}")
        k(f"s_lshl_b32 s31, s{NJ}, 10")
        k(f"s_lshl_b32 s32, s{WN}, 7")
        k("s_add_u32 s31, s31, s32")
        k(f"s_add_u32 s31, s31, {WS_UV}")
        k("s_add_u32 s32, s31, 0x4000")
        k("v_lshlrev_b32 v11, 4, v7")
        for j in range(NB):
            for q in range(4):
                k(f"buffer_load_dwordx4 {v(acc(1,j)+4*q,4)}, v11, s[16:19], s31 offen offset:{256*j+32*q}")
                k(f"buffer_load_dwordx4 {v(acc(0,j)+4*q,4)}, v11, s[16:19], s32 offen offset:{256*j+32*q}")
        k(f"s_waitcnt vmcnt({NB*8})")
        MU, SD = 12, 14
        for i in range(MB):
            b = ST + 32 * i
            k(f"v_add_f32 v16, v{b}, v{b+2}")
            for q in range(2, 16):
                k(f"v_add_f32 v16, v16, v{b+2*q}")
            k("v_mov_b32 v17, v16")
            k("s_nop 1")
            k("v_permlane32_swap_b32 v16, v17")
            k("s_nop 1")
            k("v_add_f32 v16, v16, v17")
            k(f"v_mul_f32 v{MU+i}, {hex(f2i(-1.0/1024))}, v16")
            k(f"v_add_f32 v16, v{b+1}, v{b+3}")
            for q in range(2, 16):
                k(f"v_add_f32 v16, v16, v{b+2*q+1}")
            k(f"s_mov_b32 s33, {hex(f2i(1.0/32))}")
            k("v_mov_b32 v18, 0")
            for q in range(16):
                k(f"v_fma_f32 v17, v{b+2*q}, s33, v{MU+i}")
                k("v_fmac_f32 v18, v17, v17")
            k(f"v_fmac_f32 v16, {hex(f2i(32.0))}, v18")
            k("v_mov_b32 v17, v16")
            k("s_nop 1")
            k("v_permlane32_swap_b32 v16, v17")
            k("s_nop 1")
            k("v_add_f32 v16, v16, v17")
            k(f"v_mov_b32 v17, {hex(f2i(1e-5))}")
            k(f"v_fmac_f32 v17, {hex(f2i(1.0/1024))}, v16")
            k(f"v_sqrt_f32 v{SD+i}, v17")
            k(f"v_rsq_f32 v{20+i}, v17")
        skip = k.newlabel("skiprs")
        k(f"s_or_b32 s33, s{NJ}, s{WN}")
        k("s_cmp_lg_u32 s33, 0")
        k(f"s_cbranch_scc1 {skip}")
        k(f"v_add_u32 v22, s{ROW0}, v0")
        k("v_lshlrev_b32 v22, 2, v22")
        k("v_cmp_gt_u32 vcc, 32, v0")
        k("s_nop 1")
        k("v_cndmask_b32 v20, v21, v20, vcc")
        k(f"s_mov_b32 s33, {WS_RSTD}")
        k("buffer_store_dword v20, v22, s[16:19], s33 offen")
        k.label(skip)
        k("s_waitcnt vmcnt(0)")
        for j in range(NB):
            for r in range(16):
                a0, a1 = acc(0, j) + r, acc(1, j) + r
                k(f"v_mul_f32 v16, v{a0}, v{SD+1}")
                k(f"v_mul_f32 v{a0}, v{a0}, v{SD}")
                k(f"v_fmac_f32 v{a0}, v{a1}, v{MU}")
                k(f"v_fma_f32 v{a1}, v{a1}, v{MU+1}, v16")

    def reads(buf, kb):
        out = []
        for i in range(MB):
            out.append(f"ds_read_b128 {v(FA(buf,i),4)}, v{VA} offset:{kb*4096 + i*1024}")
        for j in range(NB):
            for t in range(2):
                out.append(f"ds_read_b64_tr_b16 {v(FW(buf,j)+2*t,2)}, v{VW} offset:{j*8192 + kb*2048 + t*TOFF}")
        o2 = [out[0], out[MB], out[MB + 1]] + out[1:MB] + out[MB + 2:]
        return o2

    def mfmas(buf):
        out = []
        for j in range(NB):
            for i in range(MB):
                A_, B_ = v(FW(buf, j), 4), v(FA(buf, i), 4)
                if kind == "qkv" and j == 2:
                    A_, B_ = B_, A_
                out.append(f"v_mfma_f32_32x32x16_bf16 {v(acc(i,j),16)}, {A_}, {B_}, {v(acc(i,j),16)}")
        return out

    def interleave(mf, rd, per=2):
        rd = list(rd)
        for m in mf:
            k(m)
            for _ in range(per):
                if rd:
                    k(rd.pop(0))
        for r in rd:
            k(r)

    SB, CNT = 34, 35
    k(f"s_mov_b32 s{SB}, 0")
    k(f"s_mov_b32 s{CNT}, 0")
    k(f"v_mov_b32 v{VA}, v{VA0}")
    k(f"v_mov_b32 v{VW}, v{VW0}")
    k("s_barrier")
    for r_ in reads(0, 0):
        k(r_)
    loop = k.newlabel("loop")
    k.label(loop)
    per = 2 if NB > 1 else 2
    for st in range(3):
        k("s_waitcnt lgkmcnt(0)")
        interleave(mfmas(st % 2), reads((st + 1) % 2, st + 1), per)
    k(f"s_add_u32 s{SB}, s{SB}, {STAGE}")
    k(f"s_cmp_eq_u32 s{SB}, {R*STAGE}")
    k(f"s_cselect_b32 s{SB}, 0, s{SB}")
    k(f"s_add_u32 s{CNT}, s{CNT}, 1")
    k("s_waitcnt lgkmcnt(0)")
    mf = mfmas(1)
    k(mf[0])
    k(f"v_add_u32 v{VA}, s{SB}, v{VA0}")
    k(f"v_add_u32 v{VW}, s{SB}, v{VW0}")
    k("s_barrier")
    rd = reads(0, 0)
    k(rd[0]); k(rd[1]); k(rd[2])
    interleave(mf[1:], rd[3:], per)
    k(f"s_cmp_lt_u32 s{CNT}, {NS}")
    k(f"s_cbranch_scc1 {loop}")
    k("s_waitcnt lgkmcnt(0) vmcnt(0)")
    k("s_nop 15")

    k("v_lshlrev_b32 v11, 4, v0")
    T = FR
    def pack_block(base, dst):
        for d in range(8):
            k(f"v_cvt_pk_bf16_f32 v{dst+d}, v{base+2*d}, v{base+2*d+1}")
    if kind == "qkv":
        k.srd_off(40, 6, WS_Q, 3 * 0x400000)
        k(f"s_lshl_b32 s29, s{NJ}, 1")
        k(f"s_add_u32 s29, s29, s{WN}")
        k("s_lshl_b32 s29, s29, 17")
        k(f"s_lshl_b32 s30, s{ROW0}, 6")
        k("s_add_u32 s29, s29, s30")
        k(f"s_add_u32 s30, s29, {WS_K-WS_Q}")
        k(f"s_add_u32 s31, s29, {WS_V-WS_Q}")
        k(f"s_mov_b32 s32, {hex(f2i(LOG2E * 32 ** -0.5))}")
        n = 0
        for j in (1, 2, 0):
            for i in range(MB):
                b = acc(i, j)
                if j == 0:
                    for r in range(16):
                        k(f"v_mul_f32 v{b+r}, s32, v{b+r}")
                dst = T + 8 * (n % 4)
                n += 1
                pack_block(b, dst)
                for f in range(2):
                    k(f"buffer_store_dwordx4 {v(dst+4*f,4)}, v11, s[40:43], s{29+j} offen offset:{2048*i+1024*f}")
    elif kind == "w1":
        KBH = F_ // 16
        k.srd_off(40, 6, WS_H, H_BYTES)
        k(f"s_mul_i32 s29, s{MI}, {KBH*4096}")
        k(f"s_lshl_b32 s30, s{NJ}, 16")
        k("s_add_u32 s29, s29, s30")
        k(f"s_lshl_b32 s30, s{WN}, 13")
        k("s_add_u32 s29, s29, s30")
        k(f"s_lshl_b32 s30, s{WM}, 11")
        k("s_add_u32 s29, s29, s30")
        n = 0
        for j in range(NB):
            k(f"s_add_u32 s30, s29, {j*16384}")
            k(f"s_add_u32 s31, s29, {j*16384+4096}")
            for i in range(MB):
                dst = T + 8 * (n % 4)
                n += 1
                pack_block(acc(i, j), dst)
                for d in range(8):
                    k(f"v_pk_max_i16 v{dst+d}, v{dst+d}, 0")
                for f in range(2):
                    k(f"buffer_store_dwordx4 {v(dst+4*f,4)}, v11, s[40:43], s{30+f} offen offset:{1024*i}")
    elif kind == "wo":
        k.srd_off(40, 6, WS_X2, 2 * ACT_BYTES)
        k(f"s_lshl_b32 s31, s{MI}, 18")
        k(f"s_lshl_b32 s32, s{NBI}, 13")
        k("s_add_u32 s31, s31, s32")
        k(f"s_lshl_b32 s32, s{WM}, 11")
        k("s_add_u32 s31, s31, s32")
        k("s_add_u32 s32, s31, 4096")
        k(f"s_add_u32 s33, s31, {WS_Y2-WS_X2}")
        k(f"s_add_u32 s34, s32, {WS_Y2-WS_X2}")
        k(f"v_add_u32 v12, s{ROW0}, v9")
        k("v_lshlrev_b32 v12, 3, v12")
        k(f"s_lshl_b32 s35, s{NBI}, 14")
        k(f"s_add_u32 s35, s35, {WS_STATS}")
        for i in range(MB):
            b = acc(i, 0)
            P1, P2 = EX + 48 + 16 * i, EX + 48 + 16 * i + 8
            for d in range(8):
                k(f"v_lshlrev_b32 v16, 16, v{XR+8*i+d}")
                k(f"v_and_b32 v17, 0xffff0000, v{XR+8*i+d}")
                k(f"v_fmac_f32 v16, v{b+2*d}, v{G+2*d}")
                k(f"v_fmac_f32 v17, v{b+2*d+1}, v{G+2*d+1}")
                k(f"v_cvt_pk_bf16_f32 v{P1+d}, v16, v17")
                k(f"v_lshlrev_b32 v{b+2*d}, 16, v{P1+d}")
                k(f"v_and_b32 v{b+2*d+1}, 0xffff0000, v{P1+d}")
                k(f"v_mul_f32 v16, v{b+2*d}, v{CB+2*d}")
                k(f"v_mul_f32 v17, v{b+2*d+1}, v{CB+2*d+1}")
                k(f"v_cvt_pk_bf16_f32 v{P2+d}, v16, v17")
            for f in range(2):
                k(f"buffer_store_dwordx4 {v(P2+4*f,4)}, v11, s[40:43], s{33+f} offen offset:{1024*i}")
            for f in range(2):
                k(f"buffer_store_dwordx4 {v(P1+4*f,4)}, v11, s[40:43], s{31+f} offen offset:{1024*i}")
            k(f"v_add_f32 v16, v{b}, v{b+1}")
            for r in range(2, 16):
                k(f"v_add_f32 v16, v16, v{b+r}")
            k("v_mov_b32 v17, v16")
            k("s_nop 1")
            k("v_permlane32_swap_b32 v16, v17")
            k("s_nop 1")
            SO = 20 + 2 * i
            k(f"v_add_f32 v{SO}, v16, v17")
            k(f"v_mul_f32 v18, {hex(f2i(1.0/32))}, v{SO}")
            k("v_mov_b32 v16, 0")
            for r in range(16):
                k(f"v_sub_f32 v17, v{b+r}, v18")
                k("v_fmac_f32 v16, v17, v17")
            k("v_mov_b32 v17, v16")
            k("s_nop 1")
            k("v_permlane32_swap_b32 v16, v17")
            k("s_nop 1")
            k(f"v_add_f32 v{SO+1}, v16, v17")
        k("v_cmp_gt_u32 vcc, 32, v0")
        k("s_and_saveexec_b64 s[38:39], vcc")
        for i in range(MB):
            k(f"buffer_store_dwordx2 {v(20+2*i,2)}, v12, s[16:19], s35 offen offset:{256*i}")
    elif kind == "w2":
        k.srd(40, "s36", "s37", ACT_BYTES)
        k(f"v_add_u32 v12, s{ROW0}, v9")
        k("v_lshlrev_b32 v12, 11, v12")
        k("v_lshl_add_u32 v12, v7, 4, v12")
        k(f"s_lshl_b32 s31, s{NBI}, 6")
        k(f"s_add_u32 s32, s31, {32*2048}")
        for i in range(MB):
            b = acc(i, 0)
            P1 = T + 8 * i
            for d in range(8):
                k(f"v_lshlrev_b32 v16, 16, v{XR+8*i+d}")
                k(f"v_and_b32 v17, 0xffff0000, v{XR+8*i+d}")
                k(f"v_mul_f32 v{b+2*d}, v{b+2*d}, v{RS+i}")
                k(f"v_mul_f32 v{b+2*d+1}, v{b+2*d+1}, v{RS+i}")
                k(f"v_fmac_f32 v16, v{b+2*d}, v{G+2*d}")
                k(f"v_fmac_f32 v17, v{b+2*d+1}, v{G+2*d+1}")
                k(f"v_cvt_pk_bf16_f32 v{P1+d}, v16, v17")
            k("s_nop 1")
            for f in range(2):
                k(f"v_permlane32_swap_b32 v{P1+4*f}, v{P1+4*f+2}")
                k(f"v_permlane32_swap_b32 v{P1+4*f+1}, v{P1+4*f+3}")
            for f in range(2):
                k(f"buffer_store_dwordx4 {v(P1+4*f,4)}, v12, s[40:43], s{31+i} offen offset:{32*f}")
    k("s_endpgm")

    k.label(loader)
    LW = 25
    k(f"s_sub_u32 s{LW}, s{WV}, 4")
    k(f"s_lshl_b32 s26, s{LW}, 12")
    k("v_lshl_add_u32 v2, v0, 4, s26")
    SA_, SW_, SL = 28, 29, 30
    k(f"s_mul_i32 s{SA_}, s{MI}, {KB*4096}")
    k(f"s_mov_b32 s{SW_}, 0")
    k("v_lshrrev_b32 v1, 3, v0")
    k("v_and_b32 v3, 7, v0")
    k("v_bfe_u32 v20, v0, 4, 1")
    k("v_lshlrev_b32 v20, 2, v20")
    k("v_xor_b32 v3, v3, v20")
    k("v_lshlrev_b32 v3, 4, v3")
    k(f"s_lshl_b32 s26, s{LW}, 4")
    k("v_add_u32 v1, s26, v1")
    k(f"s_mov_b32 s26, {ldb}")
    k("v_mul_lo_u32 v1, v1, s26")
    k("v_add_u32 v1, v1, v3")
    if kind == "qkv":
        k(f"s_lshl_b32 s26, s{NJ}, 7")
        pstride = 2048
    else:
        k(f"s_mul_i32 s26, s{NJ}, {NP*128}")
        pstride = 128
    k("v_add_u32 v1, s26, v1")
    for p in range(NP):
        k(f"v_add_u32 v{4+2*p}, {p*pstride}, v1")
        k(f"v_add_u32 v{5+2*p}, {p*pstride + 8*ldb - 1024}, v1")
    LA, LWB = 31, 32
    k(f"s_lshl_b32 s{LA}, s{LW}, 12")
    k(f"s_lshl_b32 s{LWB}, s{LW}, 11")
    k(f"s_add_u32 s{LWB}, s{LWB}, 16384")
    k(f"s_mov_b32 s{SL}, 0")
    PCS = 4 + 2 * NP

    def issue_stage():
        k(f"s_add_u32 m0, s{SL}, s{LA}")
        k(f"s_add_u32 s33, s{SL}, s{LWB}")
        for q in range(4):
            k(f"buffer_load_dwordx4 v2, s[8:11], s{SA_} offen offset:{1024*q} lds")
        for p in range(NP):
            k(f"s_add_u32 m0, s33, {p*8192}")
            k("s_nop 0")
            k(f"buffer_load_dwordx4 v{4+2*p}, s[12:15], s{SW_} offen lds")
            k(f"buffer_load_dwordx4 v{5+2*p}, s[12:15], s{SW_} offen offset:1024 lds")
        k(f"s_add_u32 s{SA_}, s{SA_}, 16384")
        k(f"s_add_u32 s{SW_}, s{SW_}, {64*ldb}")
        k(f"s_add_u32 s{SL}, s{SL}, {STAGE}")
        k(f"s_cmp_eq_u32 s{SL}, {R*STAGE}")
        k(f"s_cselect_b32 s{SL}, 0, s{SL}")

    pl = k.newlabel("lpro")
    k(f"s_mov_b32 s34, 0")
    k.label(pl)
    issue_stage()
    k("s_add_u32 s34, s34, 1")
    k(f"s_cmp_lt_u32 s34, {R}")
    k(f"s_cbranch_scc1 {pl}")
    assert PCS * (R - 1) <= 63
    k(f"s_waitcnt vmcnt({PCS*(R-1)})")
    k("s_barrier")
    ml = k.newlabel("lmain")
    k.label(ml)
    k(f"s_waitcnt vmcnt({PCS*(R-2)})")
    k("s_barrier")
    issue_stage()
    k("s_add_u32 s34, s34, 1")
    k(f"s_cmp_lt_u32 s34, {NS}")
    k(f"s_cbranch_scc1 {ml}")
    for t in range(R - 2, -1, -1):
        k(f"s_waitcnt vmcnt({PCS*t})")
        k("s_barrier")
    k.label(end)
    k("s_endpgm")
    return k


def gen_attn(name):
    R = 8
    NSTG = 16
    STG = 16384
    k = K(name, 256, 512, lds=R * STG, vgpr=168, sgpr=64)
    end = exit_guard(k, 256)
    k(f"s_load_dwordx2 s[6:7], s[0:1], {KA_WS}")
    HD, QB, WV = 20, 21, 22
    k("s_and_b32 s20, s2, 7")
    k("s_lshl_b32 s20, s20, 2")
    k("s_bfe_u32 s21, s2, 0x20003")
    k("s_add_u32 s20, s20, s21")
    k("v_lshrrev_b32 v1, 6, v0")
    k("v_and_b32 v0, 63, v0")
    k(f"v_readfirstlane_b32 s{WV}, v1")
    k("s_lshr_b32 s21, s2, 5")
    k("s_lshl_b32 s21, s21, 3")
    k("s_nop 1")
    k(f"s_add_u32 s{QB}, s21, s{WV}")
    k("s_waitcnt lgkmcnt(0)")
    k.srd_off(8, 6, WS_Q, 3 * 0x400000)
    k.srd_off(12, 6, WS_O, ACT_BYTES)
    VL = 2
    k(f"v_lshlrev_b32 v{VL}, 4, v0")
    Sr = lambda b: 16 + 16 * b
    Pr = lambda b: 48 + 8 * b
    Or = lambda b: 64 + 16 * b
    Lr = lambda b: 96 + 4 * b
    CI = 104
    Q = 120
    KR = 128
    VR = 136
    ONE = 144
    M = 148
    T0 = 150
    VK, VV = 3, 4
    OFFS = 64.0
    THR = 2.0 ** 40
    SKG, SVG, SL, NI = 24, 25, 26, 27
    k(f"s_lshl_b32 s23, s{HD}, 17")
    k(f"s_lshl_b32 s28, s{WV}, 10")
    k("s_add_u32 s23, s23, s28")
    k(f"s_add_u32 s{SKG}, s23, {WS_K-WS_Q}")
    k(f"s_add_u32 s{SVG}, s23, {WS_V-WS_Q}")
    k(f"s_mov_b32 s{SL}, s28")

    def issue():
        k(f"s_mov_b32 m0, s{SL}")
        k(f"s_add_u32 s29, s{SL}, 8192")
        k(f"buffer_load_dwordx4 v{VL}, s[8:11], s{SKG} offen lds")
        k("s_mov_b32 m0, s29")
        k(f"s_add_u32 s{SKG}, s{SKG}, 8192")
        k(f"buffer_load_dwordx4 v{VL}, s[8:11], s{SVG} offen lds")
        k(f"s_add_u32 s{SVG}, s{SVG}, 8192")
        k(f"s_add_u32 s{SL}, s{SL}, {STG}")
        k(f"s_and_b32 s{SL}, s{SL}, {R*STG-1}")
    k(f"s_lshl_b32 s30, s{HD}, 17")
    k(f"s_lshl_b32 s31, s{QB}, 11")
    k("s_add_u32 s30, s30, s31")
    k(f"buffer_load_dwordx4 {v(Q,4)}, v{VL}, s[8:11], s30 offen")
    k(f"buffer_load_dwordx4 {v(Q+4,4)}, v{VL}, s[8:11], s30 offen offset:1024")
    for _ in range(R):
        issue()
    k(f"s_mov_b32 s{NI}, {R}")
    k("v_bfe_u32 v5, v0, 2, 1")
    k("v_bfe_u32 v6, v0, 4, 1")
    k("v_cmp_eq_u32 vcc, v5, v6")
    k("v_mov_b32 v5, 0x3f803f80")
    k("s_nop 0")
    k(f"v_cndmask_b32 v{ONE}, 0, v5, vcc")
    for i in range(1, 4):
        k(f"v_mov_b32 v{ONE+i}, v{ONE}")
    for r in range(16):
        k(f"v_mov_b32 v{Or(0)+r}, 0")
    for r in range(4):
        k(f"v_mov_b32 v{Lr(0)+r}, 0")
    k(f"s_mov_b32 s32, {hex(f2i(THR))}")
    THS = 32
    SGB = 33
    k(f"s_mov_b32 s{SGB}, 0")
    k(f"s_waitcnt vmcnt({2*(R-1)})")
    k("s_barrier")

    def kread(addr, tl):
        return [f"ds_read_b128 {v(KR+4*f,4)}, v{addr} offset:{tl*2048+f*1024}" for f in range(2)]
    def vread(addr, tl):
        return [f"ds_read_b128 {v(VR+4*f,4)}, v{addr} offset:{8192+tl*2048+f*1024}" for f in range(2)]
    def qk(sb, c0):
        return [f"v_mfma_f32_32x32x16_bf16 {v(sb,16)}, {v(KR,4)}, {v(Q,4)}, {c0}",
                f"v_mfma_f32_32x32x16_bf16 {v(sb,16)}, {v(KR+4,4)}, {v(Q+4,4)}, {v(sb,16)}"]
    def pv(pb, od, oc):
        return [f"v_mfma_f32_32x32x16_bf16 {v(od,16)}, {v(VR,4)}, {v(pb,4)}, {v(oc,16)}",
                f"v_mfma_f32_32x32x16_bf16 {v(od,16)}, {v(VR+4,4)}, {v(pb+4,4)}, {v(od,16)}"]
    def sm(pb, ld, lc):
        return [f"v_mfma_f32_16x16x32_bf16 {v(ld,4)}, {v(ONE,4)}, {v(pb,4)}, {v(lc,4)}",
                f"v_mfma_f32_16x16x32_bf16 {v(ld,4)}, {v(ONE,4)}, {v(pb+4,4)}, {v(ld,4)}"]
    def tilemax(sb, dst):
        k(f"v_max3_f32 v{dst}, v{sb}, v{sb+1}, v{sb+2}")
        for r in range(3, 15, 2):
            k(f"v_max3_f32 v{dst}, v{dst}, v{sb+r}, v{sb+r+1}")
        k(f"v_max_f32 v{dst}, v{dst}, v{sb+15}")
        k(f"v_mov_b32 v{dst+1}, v{dst}")
        k("s_nop 1")
        k(f"v_permlane32_swap_b32 v{dst}, v{dst+1}")
        k("s_nop 1")
        k(f"v_max_f32 v{dst}, v{dst}, v{dst+1}")
    def expcvt(sb, pb):
        for r in range(16):
            k(f"v_exp_f32 v{sb+r}, v{sb+r}")
        k("s_nop 0")
        for d in range(8):
            k(f"v_cvt_pk_bf16_f32 v{pb+d}, v{sb+2*d}, v{sb+2*d+1}")

    k(f"v_mov_b32 v{VK}, v{VL}")
    for x in kread(VK, 0):
        k(x)
    k("s_waitcnt lgkmcnt(0)")
    for x in qk(Sr(0), "0"):
        k(x)
    k("s_nop 15")
    tilemax(Sr(0), T0)
    k(f"v_add_f32 v{M}, {hex(f2i(OFFS))}, v{T0}")

    def restart():
        k(f"v_sub_f32 v{CI}, 0, v{M}")
        for r in range(1, 16):
            k(f"v_mov_b32 v{CI+r}, v{CI}")
        k(f"v_add_u32 v{VK}, s{SGB}, v{VL}")
        k(f"v_add_u32 v{VV}, s{SGB}, v{VL}")
        for x in kread(VK, 0):
            k(x)
        k("s_waitcnt lgkmcnt(0)")
        for x in qk(Sr(0), v(CI, 16)):
            k(x)
        for x in kread(VK, 1):
            k(x)
        k("s_waitcnt lgkmcnt(0)")
        for x in qk(Sr(1), v(CI, 16)):
            k(x)
        for x in kread(VK, 2):
            k(x)
        for x in vread(VV, 0):
            k(x)
        k("s_nop 7")
        expcvt(Sr(0), Pr(0))

    restart()
    entry = [k.newlabel("it1"), k.newlabel("it5")]
    slow = [k.newlabel("slow0"), k.newlabel("slow1")]
    IT = 34
    k(f"s_mov_b32 s{IT}, 0")
    k(f"s_branch {entry[0]}")
    loop = k.newlabel("loop")
    tail = k.newlabel("tail")
    k.label(loop)
    for it in range(1, 9):
        t = it
        g_prev = ((t - 1) // 4) % 2
        first_of_group = ((t - 1) % 4 == 0)
        od = Or(1 - g_prev)
        oc = Or(g_prev) if first_of_group else od
        ld_ = Lr(1 - g_prev)
        lc = Lr(g_prev) if first_of_group else ld_
        if first_of_group:
            k(f"s_add_u32 s{SGB}, s{SGB}, {STG}")
            k(f"s_and_b32 s{SGB}, s{SGB}, {R*STG-1}")
            k(f"v_cmp_nge_f32 vcc, s{THS}, v{Lr(g_prev)}")
            k(f"s_cbranch_vccnz {slow[1-g_prev]}")
            k.label(entry[g_prev])
        if it == 8:
            k(f"s_cmp_eq_u32 s{IT}, 7")
            k(f"s_cbranch_scc1 {tail}")
        sb, pb = Sr(t % 2), Pr(t % 2)
        snext = Sr((t + 1) % 2)
        pprev = Pr((t - 1) % 2)
        q_ = qk(snext, v(CI, 16))
        p_ = pv(pprev, od, oc)
        s_ = sm(pprev, ld_, lc)
        ex = [f"v_exp_f32 v{sb+r}, v{sb+r}" for r in range(16)]
        cv = [f"v_cvt_pk_bf16_f32 v{pb+d}, v{sb+2*d}, v{sb+2*d+1}" for d in range(8)]
        k("s_waitcnt lgkmcnt(2)")
        k(q_[0])
        k(ex[0]); k(ex[1]); k(ex[2])
        k(q_[1])
        if (t + 2) % 4 == 0:
            nw = k.newlabel("nw")
            dn = k.newlabel("dn")
            k(f"s_cmp_ge_u32 s{NI}, {NSTG}")
            k(f"s_cbranch_scc1 {nw}")
            k(f"s_waitcnt vmcnt({2*(R-3)})")
            k(f"s_branch {dn}")
            k.label(nw)
            k("s_waitcnt vmcnt(0)")
            k.label(dn)
            k("s_barrier")
            k(f"v_add_u32 v{VK}, {STG}, v{VK}")
            k(f"v_and_b32 v{VK}, {R*STG-1}, v{VK}")
        for x in kread(VK, (t + 2) % 4):
            k(x)
        if (t + 2) % 4 == 0:
            sk = k.newlabel("sk")
            k(f"s_cmp_ge_u32 s{NI}, {NSTG}")
            k(f"s_cbranch_scc1 {sk}")
            if it == 2:
                k(f"s_cmp_eq_u32 s{IT}, 0")
                k(f"s_cbranch_scc1 {sk}")
            issue()
            k(f"s_add_u32 s{NI}, s{NI}, 1")
            k.label(sk)
        k(ex[3]); k(cv[0]); k(ex[4]); k(ex[5])
        k("s_waitcnt lgkmcnt(2)")
        k(p_[0])
        k(cv[1]); k(ex[6]); k(ex[7]); k(cv[2])
        k(s_[0])
        k(ex[8]); k(cv[3]); k(ex[9])
        k(p_[1])
        if t % 4 == 0:
            k(f"v_add_u32 v{VV}, {STG}, v{VV}")
            k(f"v_and_b32 v{VV}, {R*STG-1}, v{VV}")
        for x in vread(VV, t % 4):
            k(x)
        k(ex[10]); k(cv[4]); k(ex[11]); k(ex[12])
        k(s_[1])
        k(cv[5]); k(ex[13]); k(ex[14]); k(cv[6]); k(ex[15])
        k("s_nop 0")
        k(cv[7])
    k(f"s_add_u32 s{IT}, s{IT}, 1")
    k(f"s_branch {loop}")

    k.label(tail)
    k("s_waitcnt lgkmcnt(0)")
    for x in pv(Pr(1), Or(0), Or(0)) + sm(Pr(1), Lr(0), Lr(0)):
        k(x)
    k("s_nop 15")
    k(f"v_cmp_nge_f32 vcc, s{THS}, v{Lr(0)}")
    k(f"s_add_u32 s{SGB}, s{SGB}, {STG}")
    k(f"s_and_b32 s{SGB}, s{SGB}, {R*STG-1}")
    k(f"s_mov_b32 s{IT}, 8")
    k(f"s_cbranch_vccnz {slow[1]}")
    fin = k.newlabel("fin")
    k.label(fin)
    k(f"v_rcp_f32 v{T0}, v{Lr(0)}")
    k("s_nop 0")
    for r in range(16):
        k(f"v_mul_f32 v{Or(0)+r}, v{Or(0)+r}, v{T0}")
    for d in range(8):
        k(f"v_cvt_pk_bf16_f32 v{Pr(0)+d}, v{Or(0)+2*d}, v{Or(0)+2*d+1}")
    k(f"s_lshr_b32 s30, s{QB}, 2")
    k("s_lshl_b32 s30, s30, 18")
    k(f"s_lshl_b32 s31, s{HD}, 13")
    k("s_add_u32 s30, s30, s31")
    k(f"s_and_b32 s31, s{QB}, 3")
    k("s_lshl_b32 s31, s31, 10")
    k("s_add_u32 s30, s30, s31")
    k("s_add_u32 s31, s30, 4096")
    k(f"buffer_store_dwordx4 {v(Pr(0),4)}, v{VL}, s[12:15], s30 offen")
    k(f"buffer_store_dwordx4 {v(Pr(0)+4,4)}, v{VL}, s[12:15], s31 offen")
    k("s_endpgm")

    for g in range(2):
        k.label(slow[g])
        k("s_waitcnt lgkmcnt(0)")
        k("s_nop 15")
        od, ld_ = Or(1 - g), Lr(1 - g)
        for r in range(16):
            k(f"v_mov_b32 v{od+r}, v{Or(g)+r}")
        for r in range(4):
            k(f"v_mov_b32 v{ld_+r}, v{Lr(g)+r}")
        k(f"s_sub_u32 s35, s{SGB}, {STG}")
        k(f"s_and_b32 s35, s35, {R*STG-1}")
        k(f"v_add_u32 v{VK}, s35, v{VL}")
        k("s_mov_b32 s36, 0")
        sl = k.newlabel("sl")
        k.label(sl)
        for x in kread(VK, 0) + vread(VK, 0):
            k(x)
        k("s_waitcnt lgkmcnt(0)")
        for x in qk(Sr(0), "0"):
            k(x)
        k("s_nop 15")
        tilemax(Sr(0), T0)
        k(f"v_add_f32 v{T0}, {hex(f2i(OFFS))}, v{T0}")
        k(f"v_max_f32 v{T0}, v{T0}, v{M}")
        k(f"v_sub_f32 v{T0+1}, v{M}, v{T0}")
        k(f"v_exp_f32 v{T0+1}, v{T0+1}")
        k(f"v_mov_b32 v{M}, v{T0}")
        for r in range(16):
            k(f"v_sub_f32 v{Sr(0)+r}, v{Sr(0)+r}, v{M}")
        for r in range(16):
            k(f"v_mul_f32 v{od+r}, v{od+r}, v{T0+1}")
        for r in range(4):
            k(f"v_mul_f32 v{ld_+r}, v{ld_+r}, v{T0+1}")
        expcvt(Sr(0), Pr(0))
        k("s_nop 1")
        for x in pv(Pr(0), od, od) + sm(Pr(0), ld_, ld_):
            k(x)
        k("s_nop 15")
        k(f"v_add_u32 v{VK}, 2048, v{VK}")
        k("s_add_u32 s36, s36, 1")
        k("s_cmp_lt_u32 s36, 4")
        k(f"s_cbranch_scc1 {sl}")
        if g == 1:
            k(f"s_cmp_eq_u32 s{IT}, 8")
            k(f"s_cbranch_scc1 {fin}")
        restart()
        k(f"s_branch {entry[1-g]}")
    k.label(end)
    k("s_endpgm")
    return k


def build(extra_empty=0):
    ks = [gen_gemv("mod_kernel", "mod"), gen_ln1("ln1_kernel"), gen_gemv("uv_kernel", "uv"),
          gen_gemm("qkv_kernel", "qkv"), gen_attn("attn_kernel"), gen_gemm("wo_kernel", "wo"),
          gen_gemm("w1_kernel", "w1"), gen_gemm("w2_kernel", "w2")]
    launches = list(ks)
    if extra_empty:
        e = K("empty_kernel", 256, 256, vgpr=8, sgpr=16)
        e("s_endpgm")
        ks.append(e)
        launches = [e] * extra_empty + launches
    return assemble_file(ks, launches)


if __name__ == "__main__":
    out = sys.argv[1] if len(sys.argv) > 1 else "adaLN_cond__softmax_full_mha__dense_activation_relu__prompt.s"
    extra = int(sys.argv[2]) if len(sys.argv) > 2 else 0
    open(out, "w").write(build(extra))
    print("wrote", out)
```

```python
import sys, os, struct
sys.path.insert(0, os.path.dirname(os.path.abspath(__file__)))
from asmlib import K, v, s, a, assemble_file

S_, D_, F_, NH = 2048, 1024, 3584, 32
KA_X, KA_WQKV, KA_WO, KA_BX, KA_W1, KA_W2, KA_C, KA_WMOD, KA_OUT, KA_DBG, KA_WS = [8 * i for i in range(11)]
WS_MODP = 0x000000
WS_RSTD = 0x020000
WS_UVP = 0x080000
WS_ST2 = 0x040000
WS_SMALL = 0x100000
WS_XT = 0x100000
WS_Q = 0x500000
WS_K = 0x900000
WS_V = 0xD00000
WS_O = 0x1100000
WS_X2 = 0x1500000
WS_Y2 = 0x1900000
WS_H = 0x1D00000
WS_H1 = 0x2B00000
WS_WT = 0x3000000
ACT_BYTES = S_ * D_ * 2
H_BYTES = S_ * F_ * 2
LOG2E = 1.4426950408889634
MPS = 6144 * 4


def f2i(x):
    return struct.unpack("<I", struct.pack("<f", x))[0]


PROFILE = False
STF = " sc0 sc1"
WS_PROF = 0x8000000
_kidx = {}
NST = 7


def exit_guard(k, nwg):
    end = k.newlabel("end")
    if PROFILE:
        k("s_memrealtime s[80:81]")
        k("s_memtime s[82:83]")
    k(f"s_cmp_ge_u32 s2, {nwg}")
    k(f"s_cbranch_scc1 {end}")
    if PROFILE:
        _kidx.setdefault(k.name, len(_kidx))
        k(f"s_load_dwordx2 s[84:85], s[0:1], {KA_WS}")
        k("s_mov_b32 s90, s2")
        for i in range(NST):
            k(f"s_mov_b32 s{64+2*i}, 0")
        k.sgpr = 96
    return end


def tick(k, i):
    if PROFILE:
        k(f"s_memtime s[{64+2*i}:{65+2*i}]")


def flush(k, tmpv, wave_sgpr=None, wave=0, role=0):
    if not PROFILE:
        return
    sk = k.newlabel("st")
    if wave_sgpr is not None:
        k(f"s_cmp_lg_u32 s{wave_sgpr}, {wave}")
        k(f"s_cbranch_scc1 {sk}")
    k("s_mov_b64 exec, -1")
    k("s_waitcnt vmcnt(0)")
    k("s_memrealtime s[86:87]")
    k("s_memtime s[88:89]")
    k("s_waitcnt lgkmcnt(0)")
    k(f"s_add_u32 s92, s84, {hex(WS_PROF + _kidx[k.name] * 0x20000)}")
    k("s_addc_u32 s93, s85, 0")
    k("s_mov_b32 s94, 0x20000")
    k("s_mov_b32 s95, 0x20000")
    k("s_lshl_b32 s91, s90, 7")
    srcs = [80, 82, 86, 88] + [64 + 2 * i for i in range(NST)] + [64]
    for j, sr in enumerate(srcs):
        k(f"v_mov_b32 v{tmpv+j}, s{sr}")
    k(f"v_mov_b32 v{tmpv+12}, 0")
    for j in range(3):
        k(f"buffer_store_dwordx4 {v(tmpv+4*j,4)}, v{tmpv+12}, s[92:95], s91 offen offset:{64*role+16*j}")
    k.label(sk)


def half_reduce(k, r, tmp, op="v_add_f32"):
    k(f"v_mov_b32 v{tmp}, v{r}")
    k("s_nop 1")
    k(f"v_permlane32_swap_b32 v{r}, v{tmp}")
    k("s_nop 1")
    k(f"{op} v{r}, v{r}, v{tmp}")


def row8_reduce(k, r, tmp):
    k("s_nop 1")
    k(f"v_add_f32_dpp v{r}, v{r}, v{r} row_ror:8 row_mask:0xf bank_mask:0xf")
    k(f"v_mov_b32 v{tmp}, v{r}")
    k("s_nop 1")
    k(f"v_permlane16_swap_b32 v{r}, v{tmp}")
    k("s_nop 1")
    k(f"v_add_f32 v{r}, v{r}, v{tmp}")
    half_reduce(k, r, tmp)


def round_bf16(k, r):
    k(f"v_cvt_pk_bf16_f32 v{r}, v{r}, v{r}")
    k(f"v_and_b32 v{r}, 0xffff0000, v{r}")


def gemv_addr(k, ld, task):
    k(f"s_and_b32 s22, s{task}, 3")
    k(f"s_lshr_b32 s23, s{task}, 2")
    k("v_and_b32 v1, 7, v0")
    k("v_lshrrev_b32 v2, 3, v0")
    k(f"v_mul_u32_u24 v3, {ld}, v2")
    k("v_lshl_add_u32 v3, v1, 4, v3")
    k(f"s_mul_i32 s24, s22, {256*ld}")
    k("s_lshl_b32 s25, s23, 7")
    k("s_add_u32 s24, s24, s25")


def gemv_loads(k, ld, W):
    for i in range(8):
        k(f"buffer_load_dwordx4 {v(W+4*i,4)}, v3, s[8:11], s24 offen nt")
        if i < 7:
            k(f"s_add_u32 s24, s24, {32*ld}")


GPITCH = 80


def gemv_finish(k, nvec, W, C, T, A, ldsoff, end, out_base, part_stride, vec_stride):
    k("v_lshrrev_b32 v5, 4, v0")
    k("v_lshlrev_b32 v5, 2, v5")
    k(f"v_mul_u32_u24 v6, {8*GPITCH}, v1")
    k("v_add_u32 v5, v5, v6")
    for i in range(8):
        k(f"s_waitcnt vmcnt({7-i})")
        for d in range(4):
            src = W + 4 * i + d
            k(f"v_lshlrev_b32 v{T}, 16, v{src}")
            k(f"v_and_b32 v{T+1}, 0xffff0000, v{src}")
            op = "v_mul_f32" if i == 0 else "v_fmac_f32"
            for vec in range(nvec):
                k(f"{op} v{A+8*vec+2*d}, v{T}, v{C+8*vec+i}")
                k(f"{op} v{A+8*vec+2*d+1}, v{T+1}, v{C+8*vec+i}")
    k("s_nop 1")
    for r in range(8 * nvec):
        k(f"v_add_f32_dpp v{A+r}, v{A+r}, v{A+r} row_ror:8 row_mask:0xf bank_mask:0xf")
    for r in range(8 * nvec):
        k(f"ds_write_b32 v5, v{A+r} offset:{ldsoff + (r//8)*64*GPITCH + (r%8)*GPITCH}")
    k("s_waitcnt lgkmcnt(0)")
    k("s_barrier")
    k(f"v_cmp_gt_u32 vcc, {64*nvec}, v0")
    k("s_and_saveexec_b64 s[30:31], vcc")
    k(f"s_cbranch_execz {end}")
    k(f"v_mul_u32_u24 v5, {GPITCH}, v0")
    for r in range(4):
        k(f"ds_read_b128 {v(8+4*r,4)}, v5 offset:{ldsoff+16*r}")
    k("v_and_b32 v2, 63, v0")
    k("v_lshlrev_b32 v2, 2, v2")
    if nvec == 2:
        k("v_lshrrev_b32 v3, 6, v0")
        k(f"v_mul_u32_u24 v3, {vec_stride}, v3")
        k("v_add_u32 v2, v2, v3")
    k(f"s_mul_i32 s24, s22, {part_stride}")
    k("s_lshl_b32 s25, s23, 8")
    k("s_add_u32 s24, s24, s25")
    k(f"s_add_u32 s24, s24, {out_base}")
    k("s_waitcnt lgkmcnt(0)")
    w = 16
    while w > 1:
        w //= 2
        for r in range(w):
            k(f"v_add_f32 v{8+r}, v{8+r}, v{8+w+r}")
    k(f"buffer_store_dword v8, v2, s[16:19], s24 offen")


def gen_mod(name, o=None):
    o = o or {}
    NG = 384
    NPF = o.get("pfx", 0)
    nwg = NG + NPF
    k = K(name, nwg, 256, lds=64 * GPITCH, vgpr=80, sgpr=48)
    end = exit_guard(k, nwg)
    if NPF:
        pf = k.newlabel("pf")
        k(f"s_cmp_ge_u32 s2, {NG}")
        k(f"s_cbranch_scc1 {pf}")
    k(f"s_load_dwordx4 s[4:7], s[0:1], {KA_C}")
    k(f"s_load_dwordx2 s[20:21], s[0:1], {KA_WS}")
    ld = 6144 * 2
    gemv_addr(k, ld, 2)
    k("v_lshlrev_b32 v4, 1, v2")
    k("s_lshl_b32 s25, s22, 9")
    k("s_waitcnt lgkmcnt(0)")
    k.srd(8, "s6", "s7", 1024 * ld)
    k.srd(12, "s4", "s5", 2048)
    W, C, T, A = 8, 40, 48, 56
    for i in range(8):
        k(f"buffer_load_ushort v{C+i}, v4, s[12:15], s25 offen offset:{64*i}")
    gemv_loads(k, ld, W)
    k.srd(16, "s20", "s21", WS_SMALL)
    k("s_waitcnt vmcnt(8)")
    for i in range(8):
        k(f"v_lshlrev_b32 v{C+i}, 16, v{C+i}")
    for i in range(8):
        k(f"v_mul_f32 v{T+i}, {hex(f2i(-LOG2E))}, v{C+i}")
    for i in range(8):
        k(f"v_exp_f32 v{T+i}, v{T+i}")
    for i in range(8):
        k(f"v_add_f32 v{T+i}, 1.0, v{T+i}")
    for i in range(8):
        k(f"v_rcp_f32 v{T+i}, v{T+i}")
    for i in range(8):
        k(f"v_mul_f32 v{C+i}, v{C+i}, v{T+i}")
    for i in range(8):
        round_bf16(k, C + i)
    gemv_finish(k, 1, W, C, T, A, 0, end, WS_MODP, MPS, 0)
    flush(k, 64)
    k("s_endpgm")
    if NPF:
        k.label(pf)
        k(f"s_load_dwordx2 s[4:5], s[0:1], {KA_X}")
        k(f"s_sub_u32 s3, s2, {NG}")
        k("s_lshl_b32 s3, s3, 14")
        k("v_lshlrev_b32 v1, 4, v0")
        k("s_waitcnt lgkmcnt(0)")
        k.srd(8, "s4", "s5", ACT_BYTES)
        for i in range(4):
            k(f"buffer_load_dwordx4 {v(8+4*i,4)}, v1, s[8:11], s3 offen{o.get('pfflag', ' nt')}")
            k("s_add_u32 s3, s3, 4096")
        k("s_waitcnt vmcnt(0)")
        flush(k, 64)
    k.label(end)
    k("s_endpgm")
    return k


def sum4_round(k, b, n, plus1):
    for e in range(n):
        k(f"v_add_f32 v{b+e}, v{b+e}, v{b+n+e}")
        k(f"v_add_f32 v{b+2*n+e}, v{b+2*n+e}, v{b+3*n+e}")
    for e in range(n):
        k(f"v_add_f32 v{b+e}, v{b+e}, v{b+2*n+e}")
    for e in range(n):
        round_bf16(k, b + e)
    if plus1:
        for e in range(n):
            k(f"v_add_f32 v{b+e}, 1.0, v{b+e}")
        for e in range(n):
            round_bf16(k, b + e)


def gen_ln(name, o=None):
    o = o or {}
    NX, NU, NPF = 256, 224, 192
    nwg = NX + NU + NPF
    k = K(name, nwg, 256, lds=12288, vgpr=128, sgpr=48)
    end = exit_guard(k, nwg)
    k(f"s_load_dwordx2 s[20:21], s[0:1], {KA_WS}")
    urole, pfrole = k.newlabel("urole"), k.newlabel("pfrole")
    k(f"s_cmp_ge_u32 s2, {NX+NU}")
    k(f"s_cbranch_scc1 {pfrole}")
    k(f"s_cmp_ge_u32 s2, {NX}")
    k(f"s_cbranch_scc1 {urole}")
    k(f"s_load_dwordx2 s[4:5], s[0:1], {KA_X}")
    k("v_and_b32 v1, 7, v0")
    k("v_bfe_u32 v2, v0, 3, 3")
    k("v_lshrrev_b32 v3, 6, v0")
    k("v_lshrrev_b32 v6, 1, v2")
    k("v_lshl_add_u32 v6, v3, 4, v6")
    k("v_and_b32 v7, 1, v2")
    k("v_lshlrev_b32 v5, 5, v6")
    k("v_lshl_add_u32 v5, v7, 3, v5")
    k("v_lshl_add_u32 v5, v1, 11, v5")
    k("s_lshl_b32 s22, s2, 14")
    k("v_lshlrev_b32 v4, 7, v6")
    k("v_lshl_add_u32 v4, v7, 6, v4")
    k("v_lshlrev_b32 v6, 12, v6")
    k("v_lshl_add_u32 v6, v7, 9, v6")
    k("v_lshl_add_u32 v6, v1, 4, v6")
    k("v_lshlrev_b32 v2, 4, v0")
    k("s_lshr_b32 s24, s2, 4")
    k("s_lshl_b32 s24, s24, 18")
    k("s_bfe_u32 s25, s2, 0x20002")
    k("s_lshl_b32 s25, s25, 10")
    k("s_add_u32 s24, s24, s25")
    k("s_and_b32 s25, s2, 3")
    k("s_lshl_b32 s25, s25, 7")
    k("s_add_u32 s24, s24, s25")
    k("s_waitcnt lgkmcnt(0)")
    k.srd(8, "s4", "s5", ACT_BYTES)
    k.srd(12, "s20", "s21", WS_SMALL)
    X, XF, P0, R0 = 8, 24, 64, 56
    for i in range(4):
        for j in range(2):
            k(f"buffer_load_dwordx2 {v(X+4*i+2*j,2)}, v5, s[8:11], s22 offen offset:{128*i+16*j}{o.get('xflag', '')}")
    for vec, base in enumerate((1024, 0)):
        for part in range(4):
            k(f"s_mov_b32 s30, {WS_MODP + part*MPS + base*4}")
            k(f"buffer_load_dwordx4 {v(P0+16*vec+4*part,4)}, v2, s[12:15], s30 offen")
    k.srd_off(16, 20, WS_XT, ACT_BYTES)
    k.srd_off(32, 20, WS_H1, ACT_BYTES)
    for i in range(1, 4):
        k(f"s_add_u32 s{24+i}, s24, {16384*i}")
    k("v_lshlrev_b32 v7, 4, v1")
    k(f"v_lshl_add_u32 v{R0}, v3, 2, v7")
    k("v_lshrrev_b32 v100, 2, v0")
    k("v_lshlrev_b32 v100, 7, v100")
    k("v_and_b32 v101, 1, v0")
    k("v_lshl_add_u32 v100, v101, 6, v100")
    k("v_bfe_u32 v101, v0, 1, 1")
    k("v_lshl_add_u32 v100, v101, 4, v100")
    SL = 8192
    k("s_waitcnt vmcnt(8)")
    for d in range(16):
        k(f"v_lshlrev_b32 v{XF+2*d}, 16, v{X+d}")
        k(f"v_and_b32 v{XF+2*d+1}, 0xffff0000, v{X+d}")
    for j in range(4):
        k(f"v_add_f32 v{58+j}, v{XF+j}, v{XF+4+j}")
    for b in range(2, 8):
        for j in range(4):
            k(f"v_add_f32 v{58+j}, v{58+j}, v{XF+4*b+j}")
    k("v_add_f32 v58, v58, v59")
    k("v_add_f32 v60, v60, v61")
    k("v_add_f32 v58, v58, v60")
    row8_reduce(k, 58, 59)
    k(f"ds_write_b32 v{R0}, v58 offset:{SL}")
    k("s_waitcnt lgkmcnt(0)")
    k("s_barrier")
    k(f"ds_read_b128 v[60:63], v7 offset:{SL}")
    k("s_waitcnt vmcnt(0)")
    for i in range(4):
        k(f"buffer_store_dwordx4 {v(X+4*i,4)}, v6, s[16:19], s{24+i} offen{STF}")
    for vec in range(2):
        sum4_round(k, P0 + 16 * vec, 4, vec == 0)
        k(f"ds_write_b128 v100, {v(P0+16*vec,4)} offset:{32*vec}")
    k("s_waitcnt lgkmcnt(2)")
    k("v_add_f32 v60, v60, v61")
    k("v_add_f32 v62, v62, v63")
    k("v_add_f32 v60, v60, v62")
    k(f"v_mul_f32 v57, {hex(f2i(1.0/1024))}, v60")
    for e in range(32):
        k(f"v_sub_f32 v{XF+e}, v{XF+e}, v57")
    for j in range(4):
        k(f"v_mul_f32 v{58+j}, v{XF+j}, v{XF+j}")
    for b in range(1, 8):
        for j in range(4):
            k(f"v_fmac_f32 v{58+j}, v{XF+4*b+j}, v{XF+4*b+j}")
    k("v_add_f32 v58, v58, v59")
    k("v_add_f32 v60, v60, v61")
    k("v_add_f32 v58, v58, v60")
    row8_reduce(k, 58, 59)
    k(f"ds_write_b32 v{R0}, v58 offset:{SL+128}")
    k("s_waitcnt lgkmcnt(0)")
    k("s_barrier")
    k(f"ds_read_b128 v[60:63], v7 offset:{SL+128}")
    for i in range(4):
        for q in range(4):
            if i == 3 and q == 2:
                k("s_waitcnt lgkmcnt(10)")
            k(f"ds_read_b128 {v(P0+16*i+4*q,4)}, v4 offset:{512*i+16*q}")
    k("v_add_f32 v60, v60, v61")
    k("v_add_f32 v62, v62, v63")
    k("v_add_f32 v60, v60, v62")
    k(f"v_mov_b32 v62, {hex(f2i(1e-5))}")
    k(f"v_fmac_f32 v62, {hex(f2i(1.0/1024))}, v60")
    k("v_rsq_f32 v62, v62")
    k("s_nop 0")
    for e in range(32):
        k(f"v_mul_f32 v{XF+e}, v{XF+e}, v62")
    for i in range(4):
        k(f"s_waitcnt lgkmcnt({12-4*i})")
        for e in range(8):
            k(f"v_fma_f32 v{XF+8*i+e}, v{XF+8*i+e}, v{P0+16*i+e}, v{P0+16*i+8+e}")
        for d in range(4):
            k(f"v_cvt_pk_bf16_f32 v{P0+16*i+d}, v{XF+8*i+2*d}, v{XF+8*i+2*d+1}")
        k(f"buffer_store_dwordx4 {v(P0+16*i,4)}, v6, s[32:35], s{24+i} offen{STF}")
    flush(k, 8)
    k("s_endpgm")

    k.label(urole)
    k(f"s_load_dwordx2 s[4:5], s[0:1], {KA_W1}")
    k(f"s_sub_u32 s3, s2, {NX}")
    ld = F_ * 2
    gemv_addr(k, ld, 3)
    k("v_lshlrev_b32 v4, 2, v0")
    k("s_lshl_b32 s26, s22, 10")
    k("s_waitcnt lgkmcnt(0)")
    k.srd(8, "s4", "s5", 1024 * ld)
    k.srd(16, "s20", "s21", WS_SMALL)
    W, C, T, A = 8, 40, 56, 64
    for vec, base in enumerate((4096, 3072)):
        for part in range(4):
            k(f"s_add_u32 s27, s26, {WS_MODP + part*MPS + base*4}")
            k(f"buffer_load_dword v{C+4*vec+part}, v4, s[16:19], s27 offen")
    gemv_loads(k, ld, W)
    k("v_and_b32 v5, 31, v0")
    k("v_lshlrev_b32 v5, 5, v5")
    k("v_lshrrev_b32 v6, 5, v0")
    k("v_lshl_add_u32 v5, v6, 2, v5")
    k("v_lshlrev_b32 v6, 5, v2")
    CT = 10240
    k("s_waitcnt vmcnt(8)")
    sum4_round(k, C, 1, True)
    sum4_round(k, C + 4, 1, False)
    k(f"ds_write_b32 v5, v{C} offset:{CT}")
    k(f"ds_write_b32 v5, v{C+4} offset:{CT+1024}")
    k("s_waitcnt lgkmcnt(0)")
    k("s_barrier")
    for q in range(4):
        k(f"ds_read_b128 {v(C+4*q,4)}, v6 offset:{CT + (q//2)*1024 + (q%2)*16}")
    k("s_waitcnt lgkmcnt(0)")
    gemv_finish(k, 2, W, C, T, A, 0, end, WS_UVP, 2 * F_ * 4, F_ * 4)
    flush(k, 64)
    k("s_endpgm")

    k.label(pfrole)
    k(f"s_load_dwordx2 s[4:5], s[0:1], {KA_WQKV}")
    k(f"s_sub_u32 s3, s2, {NX+NU}")
    k("s_lshl_b32 s3, s3, 15")
    k("v_lshlrev_b32 v1, 4, v0")
    k("s_waitcnt lgkmcnt(0)")
    k.srd(8, "s4", "s5", 1024 * 6144)
    for i in range(8):
        k(f"buffer_load_dwordx4 {v(8+4*i,4)}, v1, s[8:11], s3 offen")
        k("s_add_u32 s3, s3, 4096")
    k("s_waitcnt vmcnt(0)")
    flush(k, 64)
    k.label(end)
    k("s_endpgm")
    return k


def split_hilo(k, x, hi, lo):
    k(f"v_cvt_pk_bf16_f32 v{hi}, v{x}, v{x}")
    k(f"v_and_b32 v{hi}, 0xffff0000, v{hi}")
    k(f"v_sub_f32 v{lo}, v{x}, v{hi}")


def gen_gemm(name, kind, o=None):
    cfg = {
        "qkv": dict(Ktot=1024, NP=3, ldb=3072 * 2, a_off=WS_H1, tiled=None, R=4, D=3, ntn=16, xa=8, xb=4),
        "wo": dict(Ktot=1024, NP=1, a_off=WS_O, tiled=0, R=5, D=3, ntn=16, xa=4, xb=8, gate=2048),
        "w1": dict(Ktot=1024, NP=4, a_off=WS_Y2, tiled=256, R=3, D=2, ntn=14, xa=4, xb=7),
        "w2": dict(Ktot=F_, NP=1, a_off=WS_H, tiled=1152, R=5, D=3, ntn=16, xa=4, xb=8, gate=5120),
    }[kind]
    cfg.update(o or {})
    Ktot, NP, R, ntn, D = cfg["Ktot"], cfg["NP"], cfg["R"], cfg["ntn"], cfg["D"]
    tiled = cfg["tiled"]
    stf = cfg.get("stf", STF)
    wide = NP > 1
    MB, NB = (2, NP) if wide else (1, 2)
    NS = Ktot // 64
    KB = Ktot // 16
    STAGE = 16384 + NP * 8192
    TAB = R * STAGE
    LDS = TAB + {"qkv": 0, "wo": 2048, "w1": 8192, "w2": 1024}[kind]
    assert LDS <= 163840, LDS
    LDS = max(LDS, 82 * 1024)
    nwg = 16 * ntn
    a_bytes = S_ * Ktot * 2
    k = K(name, nwg, 512, lds=LDS, vgpr=256, sgpr=96)
    end = exit_guard(k, nwg)
    k(f"s_load_dwordx2 s[6:7], s[0:1], {KA_WS}")
    if tiled is None:
        k(f"s_load_dwordx2 s[4:5], s[0:1], {KA_WQKV}")
    if kind == "w2":
        k(f"s_load_dwordx2 s[36:37], s[0:1], {KA_OUT}")
    xa, xb = cfg["xa"], cfg["xb"]
    gm = 16 // xa
    k("v_lshrrev_b32 v1, 6, v0")
    k("v_and_b32 v0, 63, v0")
    k("s_and_b32 s20, s2, 7")
    k("s_lshr_b32 s21, s2, 3")
    k(f"s_and_b32 s22, s20, {gm-1}")
    k(f"s_lshr_b32 s23, s20, {gm.bit_length()-1}")
    k(f"s_and_b32 s24, s21, {xa-1}")
    k(f"s_lshr_b32 s25, s21, {xa.bit_length()-1}")
    k(f"s_mul_i32 s22, s22, {xa}")
    k("s_add_u32 s22, s22, s24")
    k(f"s_mul_i32 s23, s23, {xb}")
    k("s_add_u32 s23, s23, s25")
    MI, NJ, WV = 22, 23, 24
    k(f"v_readfirstlane_b32 s{WV}, v1")
    k("v_lshlrev_b32 v1, 4, v0")
    k("v_lshrrev_b32 v7, 5, v0")
    k("v_and_b32 v9, 31, v0")
    compute = k.newlabel("compute")
    k(f"s_cmp_lt_u32 s{WV}, 4")
    k(f"s_cbranch_scc1 {compute}")

    LW = 25
    k(f"s_sub_u32 s{LW}, s{WV}, 4")
    k(f"s_lshl_b32 s26, s{LW}, 12")
    k("v_add_u32 v2, s26, v1")
    SA_, SW_, SL, CNT = 28, 29, 30, 34
    k(f"s_mul_i32 s{SA_}, s{MI}, {KB*4096}")
    WV0 = 10
    if tiled is None:
        ldb = cfg["ldb"]
        k(f"s_mov_b32 s{SW_}, 0")
        k("v_lshrrev_b32 v4, 3, v0")
        k("v_and_b32 v3, 7, v0")
        k("v_bfe_u32 v5, v0, 4, 1")
        k("v_lshlrev_b32 v5, 2, v5")
        k("v_xor_b32 v3, v3, v5")
        k(f"s_lshl_b32 s26, s{LW}, 4")
        k("v_add_u32 v4, s26, v4")
        k(f"v_mul_u32_u24 v4, {ldb}, v4")
        k("v_lshl_add_u32 v4, v3, 4, v4")
        k(f"s_lshl_b32 s26, s{NJ}, 7")
        k("v_add_u32 v4, s26, v4")
        for p in range(NP):
            k(f"v_add_u32 v{WV0+2*p}, {p*2048}, v4")
            k(f"v_add_u32 v{WV0+2*p+1}, {p*2048 + 8*ldb - 1024}, v4")
        wreg = lambda p, j: WV0 + 2 * p + j
        wstep = 64 * ldb
    else:
        k(f"s_mul_i32 s{SW_}, s{NJ}, {NP*NS*8192}")
        k(f"s_lshl_b32 s26, s{LW}, 11")
        k("v_add_u32 v4, s26, v1")
        for p in range(NP):
            k(f"v_add_u32 v{WV0+p}, {p*NS*8192}, v4")
        wreg = lambda p, j: WV0 + p
        wstep = 8192
    k(f"s_lshl_b32 s31, s{LW}, 12")
    k(f"s_lshl_b32 s32, s{LW}, 11")
    k(f"s_add_u32 s32, s32, 16384")
    k(f"s_mov_b32 s{SL}, 0")
    k(f"s_mov_b32 s{CNT}, 0")
    k("s_waitcnt lgkmcnt(0)")
    tick(k, 0)
    k.srd_off(8, 6, cfg["a_off"], a_bytes)
    if tiled is None:
        k.srd(12, "s4", "s5", Ktot * cfg["ldb"])
    else:
        k.srd_off(12, 6, WS_WT + tiled * 8192, ntn * NP * NS * 8192)
    PCS = 4 + 2 * NP

    def issue_stage():
        k(f"s_add_u32 m0, s{SL}, s31")
        k(f"s_add_u32 s33, s{SL}, s32")
        for q in range(4):
            k(f"buffer_load_dwordx4 v2, s[8:11], s{SA_} offen offset:{1024*q} lds")
        for p in range(NP):
            k(f"s_add_u32 m0, s33, {p*8192}")
            k("s_nop 0")
            for j in range(2):
                k(f"buffer_load_dwordx4 v{wreg(p,j)}, s[12:15], s{SW_} offen offset:{1024*j} lds")
        k(f"s_add_u32 s{SA_}, s{SA_}, 16384")
        k(f"s_add_u32 s{SW_}, s{SW_}, {wstep}")
        k(f"s_add_u32 s{SL}, s{SL}, {STAGE}")
        k(f"s_cmp_eq_u32 s{SL}, {R*STAGE}")
        k(f"s_cselect_b32 s{SL}, 0, s{SL}")
        k(f"s_add_u32 s{CNT}, s{CNT}, 1")
    assert D <= R - 1 and PCS * D + 16 <= 63
    D0 = cfg.get("D0", min(2, D))
    pl = k.newlabel("lpro")
    k.label(pl)
    issue_stage()
    k(f"s_cmp_lt_u32 s{CNT}, {D0}")
    k(f"s_cbranch_scc1 {pl}")
    tick(k, 2)
    for d in range(D0, D):
        k(f"s_waitcnt vmcnt({PCS*(d-1)})")
        k("s_barrier")
        issue_stage()
        issue_stage()
    ml = k.newlabel("lmain")
    k.label(ml)
    k(f"s_waitcnt vmcnt({PCS*(D-1)})")
    k("s_barrier")
    issue_stage()
    k(f"s_cmp_lt_u32 s{CNT}, {NS}")
    k(f"s_cbranch_scc1 {ml}")
    tick(k, 3)
    extra = 0
    if kind == "w1":
        ST, UV = 32, 48
        k.srd(16, "s6", "s7", WS_SMALL)
        k(f"s_lshl_b32 s26, s{MI}, 7")
        k(f"s_lshl_b32 s27, s{LW}, 5")
        k("s_add_u32 s26, s26, s27")
        k("v_add_u32 v13, s26, v9")
        k("v_lshlrev_b32 v14, 3, v13")
        k("v_lshl_add_u32 v14, v7, 17, v14")
        for q in range(8):
            k(f"s_mov_b32 s27, {WS_ST2 + q*2048*8}")
            k(f"buffer_load_dwordx2 {v(ST+2*q,2)}, v14, s[16:19], s27 offen")
        k(f"s_lshl_b32 s26, s{NJ}, 10")
        k(f"s_lshl_b32 s27, s{LW}, 8")
        k("s_add_u32 s26, s26, s27")
        k("v_lshlrev_b32 v15, 2, v0")
        for vec in range(2):
            for part in range(4):
                k(f"s_add_u32 s27, s26, {WS_UVP + part*2*F_*4 + vec*F_*4}")
                k(f"buffer_load_dword v{UV+4*vec+part}, v15, s[16:19], s27 offen")
        extra = 16
    for t in range(D - 1, 0, -1):
        k(f"s_waitcnt vmcnt({PCS*t+extra})")
        k("s_barrier")
    k("s_waitcnt vmcnt(0)")
    if kind == "w1":
        k(f"v_add_f32 v16, v{ST}, v{ST+2}")
        k(f"v_add_f32 v18, v{ST+1}, v{ST+3}")
        for q in range(2, 8):
            k(f"v_add_f32 v16, v16, v{ST+2*q}")
            k(f"v_add_f32 v18, v18, v{ST+2*q+1}")
        half_reduce(k, 16, 17)
        k(f"v_mul_f32 v16, {hex(f2i(-1.0/1024))}, v16")
        k(f"s_mov_b32 s27, {hex(f2i(1.0/64))}")
        k("v_mov_b32 v19, 0")
        for q in range(8):
            k(f"v_fma_f32 v17, v{ST+2*q}, s27, v16")
            k("v_fmac_f32 v19, v17, v17")
        k(f"v_fmac_f32 v18, {hex(f2i(64.0))}, v19")
        half_reduce(k, 18, 17)
        k(f"v_mov_b32 v20, {hex(f2i(1e-5))}")
        k(f"v_fmac_f32 v20, {hex(f2i(1.0/1024))}, v18")
        k("v_sqrt_f32 v21, v20")
        for vec in range(2):
            b = UV + 4 * vec
            k(f"v_add_f32 v{b}, v{b}, v{b+1}")
            k(f"v_add_f32 v{b+2}, v{b+2}, v{b+3}")
            k(f"v_add_f32 v{b}, v{b}, v{b+2}")
        k("v_rcp_f32 v20, v21")
        split_hilo(k, 16, 22, 23)
        split_hilo(k, 21, 24, 25)
        split_hilo(k, UV, 26, 27)
        split_hilo(k, UV + 4, 28, 29)
        k("v_cmp_gt_u32 vcc, 32, v0")
        k("v_cvt_pk_bf16_f32 v60, v22, v22")
        k("v_cvt_pk_bf16_f32 v61, v23, v24")
        k("v_cvt_pk_bf16_f32 v62, v24, v25")
        k("v_mov_b32 v63, 0")
        for r in range(60, 63):
            k(f"v_cndmask_b32 v{r}, 0, v{r}, vcc")
        k("v_cvt_pk_bf16_f32 v64, v26, v27")
        k("v_cvt_pk_bf16_f32 v65, v26, v28")
        k("v_cvt_pk_bf16_f32 v66, v29, v28")
        k("v_mov_b32 v67, 0")
        k(f"s_lshl_b32 s26, s{LW}, 10")
        k(f"s_add_u32 s26, s26, {TAB}")
        k("v_add_u32 v14, s26, v1")
        k("ds_write_b128 v14, v[60:63]")
        k("ds_write_b128 v14, v[64:67] offset:4096")
        sk = k.newlabel("skrs")
        k(f"s_cmp_lg_u32 s{NJ}, 0")
        k(f"s_cbranch_scc1 {sk}")
        k("v_lshlrev_b32 v13, 2, v13")
        k(f"s_mov_b32 s27, {WS_RSTD}")
        k(f"buffer_store_dword v20, v13, s[16:19], s27 offen")
        k.label(sk)
        k("s_waitcnt lgkmcnt(0)")
    k("s_barrier")
    flush(k, 32, WV, 7, role=1)
    k("s_endpgm")

    k.label(compute)
    WM, WN = 25, 26
    if wide:
        k(f"s_lshr_b32 s{WM}, s{WV}, 1")
        k(f"s_and_b32 s{WN}, s{WV}, 1")
    else:
        k(f"s_mov_b32 s{WM}, s{WV}")
    NACC = MB * NB * 16
    ACC = 32
    FR = ACC + NACC
    FA = lambda b, i: FR + b * (MB + NB) * 4 + i * 4
    FW = lambda b, j: FR + b * (MB + NB) * 4 + (MB + j) * 4
    EX = FR + 2 * (MB + NB) * 4
    acc = lambda i, j: ACC + (i * NB + j) * 16
    VA0, VA = 2, 3
    VW0 = [4, 10]
    VW = [5, 11]
    k(f"s_lshl_b32 s27, s{WM}, {(MB*1024).bit_length()-1}")
    k(f"v_add_u32 v{VA0}, s27, v1")
    k("v_bfe_u32 v6, v0, 2, 2")
    k(f"v_lshlrev_b32 v{VW0[0]}, 7, v6")
    k(f"v_lshl_add_u32 v{VW0[0]}, v7, 9, v{VW0[0]}")
    k("v_bfe_u32 v8, v0, 4, 1")
    k(f"v_lshl_add_u32 v{VW0[0]}, v8, 5, v{VW0[0]}")
    k("v_and_b32 v8, 3, v0")
    k(f"v_lshl_add_u32 v{VW0[0]}, v8, 3, v{VW0[0]}")
    k(f"v_add_u32 v{VW0[0]}, 16384, v{VW0[0]}")
    k("v_lshrrev_b32 v8, 1, v6")
    if wide:
        k(f"v_xor_b32 v8, s{WN}, v8")
        k(f"v_lshl_add_u32 v{VW0[0]}, v8, 6, v{VW0[0]}")
    else:
        k("v_xor_b32 v6, 1, v8")
        k(f"v_lshl_add_u32 v{VW0[1]}, v6, 6, v{VW0[0]}")
        k(f"v_lshl_add_u32 v{VW0[0]}, v8, 6, v{VW0[0]}")
    nw = 1 if wide else 2
    ROW0 = 28
    k(f"s_lshl_b32 s{ROW0}, s{MI}, 7")
    k(f"s_lshl_b32 s29, s{WM}, {5 + (MB - 1)}")
    k(f"s_add_u32 s{ROW0}, s{ROW0}, s29")
    for r in range(NACC):
        k(f"v_mov_b32 v{ACC+r}, 0")
    k("s_waitcnt lgkmcnt(0)")
    tick(k, 0)
    k.srd(16, "s6", "s7", WS_SMALL)
    if not wide:
        G = EX
        XR = EX + 32
        XF = EX + 48
        CBV = EX + 80
        GP = EX + 112
        k.srd_off(40, 6, WS_XT if kind == "wo" else WS_X2, ACT_BYTES)
        XA = 44
        k(f"s_lshl_b32 s{XA}, s{MI}, 18")
        k(f"s_lshl_b32 s30, s{NJ}, 14")
        k(f"s_add_u32 s{XA}, s{XA}, s30")
        k(f"s_lshl_b32 s30, s{WM}, 10")
        k(f"s_add_u32 s{XA}, s{XA}, s30")
        for f in range(1, 4):
            k(f"s_add_u32 s{XA+f}, s{XA}, {4096*f}")
        k("v_lshlrev_b32 v12, 2, v0")
        k(f"v_add_u32 v14, s{ROW0}, v9")

    def late_loads():
        if wide:
            return
        vecs = [cfg["gate"]] + ([4096] if kind == "wo" else [])
        k(f"s_lshl_b32 s29, s{NJ}, 8")
        for vi, base in enumerate(vecs):
            for part in range(4):
                k(f"s_add_u32 s30, s29, {WS_MODP + base*4 + part*MPS}")
                k(f"buffer_load_dword v{GP+4*vi+part}, v12, s[16:19], s30 offen")
        if kind == "w2":
            k("v_lshlrev_b32 v15, 2, v14")
            k(f"s_mov_b32 s30, {WS_RSTD}")
            k(f"buffer_load_dword v{GP+8}, v15, s[16:19], s30 offen")
        for f in range(4):
            k(f"buffer_load_dwordx4 {v(XR+4*f,4)}, v1, s[40:43], s{XA+f} offen")

    def mid_work():
        k("s_waitcnt vmcnt(0)")
        nv = 2 if kind == "wo" else 1
        k(f"s_lshl_b32 s29, s{WV}, {8 + nv - 1}")
        k(f"s_add_u32 s29, s29, {TAB}")
        k("v_add_u32 v12, s29, v12")
        k("v_lshl_add_u32 v13, v7, 4, s29")
        sum4_round(k, GP, 1, False)
        k(f"ds_write_b32 v12, v{GP}")
        if kind == "wo":
            sum4_round(k, GP + 4, 1, True)
            k(f"ds_write_b32 v12, v{GP+4} offset:256")
        for d in range(16):
            k(f"v_lshlrev_b32 v{XF+2*d}, 16, v{XR+d}")
            k(f"v_and_b32 v{XF+2*d+1}, 0xffff0000, v{XR+d}")
        k("s_waitcnt lgkmcnt(0)")
        for q in range(8):
            k(f"ds_read_b128 {v(G+4*q,4)}, v13 offset:{32*q}")
        if kind == "wo":
            k("s_waitcnt lgkmcnt(4)")
            for q in range(8):
                k(f"ds_read_b128 {v(CBV+4*q,4)}, v13 offset:{256+32*q}")
        else:
            k("s_waitcnt lgkmcnt(0)")
            for r in range(32):
                k(f"v_mul_f32 v{G+r}, v{G+r}, v{GP+8}")

    def reads(buf, kb):
        ar = [f"ds_read_b128 {v(FA(buf,i),4)}, v{VA} offset:{kb*4096 + i*1024}" for i in range(MB)]
        wr = []
        for j in range(NB):
            ad, po = (VW[0], j * 8192) if wide else (VW[j], 0)
            for t in range(2):
                wr.append(f"ds_read_b64_tr_b16 {v(FW(buf,j)+2*t,2)}, v{ad} offset:{po + kb*2048 + t*1024}")
        return [ar[0], wr[0], wr[1]] + ar[1:] + wr[2:]

    def mfmas(buf):
        out = []
        for j in range(NB):
            for i in range(MB):
                A_, B_ = v(FW(buf, j), 4), v(FA(buf, i), 4)
                if kind == "qkv" and j == 2:
                    A_, B_ = B_, A_
                out.append(f"v_mfma_f32_32x32x16_bf16 {v(acc(i,j),16)}, {A_}, {B_}, {v(acc(i,j),16)}")
        return out

    def interleave(mf, rd, per):
        rd = list(rd)
        for m in mf:
            k(m)
            for _ in range(per):
                if rd:
                    k(rd.pop(0))
        for r in rd:
            k(r)

    SB, CNT = 34, 35
    k(f"s_mov_b32 s{SB}, 0")
    k(f"s_mov_b32 s{CNT}, 0")
    k(f"v_mov_b32 v{VA}, v{VA0}")
    for h in range(nw):
        k(f"v_mov_b32 v{VW[h]}, v{VW0[h]}")
    if cfg.get("cprio", 1):
        k("s_setprio 1")
    tick(k, 1)
    k("s_barrier")
    tick(k, 2)
    for r_ in reads(0, 0):
        k(r_)
    late_loads()
    loop, last = k.newlabel("loop"), k.newlabel("last")
    k.label(loop)
    per = 2 if wide else 3
    if not wide:
        mw, mwr = k.newlabel("mid"), k.newlabel("midret")
        k(f"s_cmp_eq_u32 s{CNT}, {NS//2}")
        k(f"s_cbranch_scc1 {mw}")
        k.label(mwr)
    for st in range(3):
        k("s_waitcnt lgkmcnt(0)")
        interleave(mfmas(st % 2), reads((st + 1) % 2, st + 1), per)
        if st == 0:
            k(f"s_add_u32 s{SB}, s{SB}, {STAGE}")
            k(f"s_cmp_eq_u32 s{SB}, {R*STAGE}")
            k(f"s_cselect_b32 s{SB}, 0, s{SB}")
    k(f"s_add_u32 s{CNT}, s{CNT}, 1")
    k(f"v_add_u32 v{VA}, s{SB}, v{VA0}")
    for h in range(nw):
        k(f"v_add_u32 v{VW[h]}, s{SB}, v{VW0[h]}")
    k(f"s_cmp_eq_u32 s{CNT}, {NS}")
    k(f"s_cbranch_scc1 {last}")
    k("s_waitcnt lgkmcnt(0)")
    mf = mfmas(1)
    k(mf[0])
    k("s_barrier")
    rd = reads(0, 0)
    k(rd[0]); k(rd[1]); k(rd[2])
    interleave(mf[1:], rd[3:], per)
    k(f"s_branch {loop}")
    if not wide:
        k.label(mw)
        mid_work()
        k(f"s_branch {mwr}")
    k.label(last)
    if kind == "w1":
        k(f"v_add_u32 v{VA}, {TAB}, v{VA0}")
        k(f"s_lshl_b32 s29, s{WN}, 9")
        k(f"s_add_u32 s29, s29, {TAB+4096}")
        k(f"v_lshl_add_u32 v{VW[0]}, v9, 4, s29")
        rd = [f"ds_read_b128 {v(FA(0,i),4)}, v{VA} offset:{i*1024}" for i in range(MB)]
        rd += [f"ds_read_b128 {v(FW(0,j),4)}, v{VW[0]} offset:{j*1024}" for j in range(NB)]
        k("s_waitcnt lgkmcnt(0)")
        interleave(mfmas(1), rd, per)
        k("s_waitcnt lgkmcnt(0)")
        for m in mfmas(0):
            k(m)
    else:
        k("s_waitcnt lgkmcnt(0)")
        for m in mfmas(1):
            k(m)
    tick(k, 3)

    T = EX if wide else FR
    def pack_block(base, dst):
        for d in range(8):
            k(f"v_cvt_pk_bf16_f32 v{dst+d}, v{base+2*d}, v{base+2*d+1}")
    if kind == "qkv":
        k.srd_off(40, 6, WS_Q, 3 * 0x400000)
        k(f"s_lshl_b32 s29, s{NJ}, 1")
        k(f"s_add_u32 s29, s29, s{WN}")
        k("s_lshl_b32 s29, s29, 17")
        k(f"s_lshl_b32 s30, s{ROW0}, 6")
        k("s_add_u32 s29, s29, s30")
        k(f"s_add_u32 s30, s29, {WS_K-WS_Q}")
        k(f"s_add_u32 s31, s29, {WS_V-WS_Q}")
        k(f"s_mov_b32 s32, {hex(f2i(LOG2E * 32 ** -0.5))}")
        k("s_mov_b32 s33, s32")
        n = 0
        for j in (0, 1, 2):
            for i in range(MB):
                b = acc(i, j)
                if j == 0:
                    for r in range(0, 16, 2):
                        k(f"v_pk_mul_f32 {v(b+r,2)}, {v(b+r,2)}, s[32:33]")
                dst = T + 8 * (n % 4)
                n += 1
                pack_block(b, dst)
                for f in range(2):
                    k(f"buffer_store_dwordx4 {v(dst+4*f,4)}, v1, s[40:43], s{29+j} offen offset:{2048*i+1024*f}{stf}")
    elif kind == "w1":
        KBH = F_ // 16
        k.srd_off(40, 6, WS_H, H_BYTES)
        k(f"s_mul_i32 s29, s{MI}, {KBH*4096}")
        k(f"s_lshl_b32 s30, s{NJ}, 16")
        k("s_add_u32 s29, s29, s30")
        k(f"s_lshl_b32 s30, s{WN}, 13")
        k("s_add_u32 s29, s29, s30")
        k(f"s_lshl_b32 s30, s{WM}, 11")
        k("s_add_u32 s29, s29, s30")
        n = 0
        for j in range(NB):
            k(f"s_add_u32 s30, s29, {j*16384}")
            k(f"s_add_u32 s31, s29, {j*16384+4096}")
            for i in range(MB):
                dst = T + 8 * (n % 4)
                n += 1
                pack_block(acc(i, j), dst)
                for d in range(8):
                    k(f"v_pk_max_i16 v{dst+d}, v{dst+d}, 0")
                for f in range(2):
                    k(f"buffer_store_dwordx4 {v(dst+4*f,4)}, v1, s[40:43], s{30+f} offen offset:{1024*i}{stf}")
    else:
        PK = XR
        if kind == "wo":
            k.srd_off(40, 6, WS_X2, 2 * ACT_BYTES)
            for f in range(4):
                k(f"s_add_u32 s{48+f}, s{XA+f}, {WS_Y2-WS_X2}")
            k("s_nop 3")
        else:
            k.srd(40, "s36", "s37", ACT_BYTES)
            k("v_lshlrev_b32 v12, 11, v14")
            k("v_lshl_add_u32 v12, v7, 4, v12")
            k(f"s_lshl_b32 s31, s{NJ}, 7")
            k("s_nop 4")
        for f in range(4):
            for d in range(4 * f, 4 * f + 4):
                k(f"v_pk_fma_f32 {v(XF+2*d,2)}, {v(ACC+2*d,2)}, {v(G+2*d,2)}, {v(XF+2*d,2)}")
            for d in range(4 * f, 4 * f + 4):
                k(f"v_cvt_pk_bf16_f32 v{PK+d}, v{XF+2*d}, v{XF+2*d+1}")
            if kind == "wo":
                for d in range(4 * f, 4 * f + 4):
                    k(f"v_lshlrev_b32 v{XF+2*d}, 16, v{PK+d}")
                    k(f"v_and_b32 v{XF+2*d+1}, 0xffff0000, v{PK+d}")
                for d in range(4 * f, 4 * f + 4):
                    k(f"v_pk_mul_f32 {v(CBV+2*d,2)}, {v(CBV+2*d,2)}, {v(XF+2*d,2)}")
                for d in range(4 * f, 4 * f + 4):
                    k(f"v_cvt_pk_bf16_f32 v{FR+d}, v{CBV+2*d}, v{CBV+2*d+1}")
                k(f"buffer_store_dwordx4 {v(FR+4*f,4)}, v1, s[40:43], s{48+f} offen{stf}")
                k(f"buffer_store_dwordx4 {v(PK+4*f,4)}, v1, s[40:43], s{XA+f} offen{stf}")
            else:
                k("s_nop 1")
                k(f"v_permlane32_swap_b32 v{PK+4*f}, v{PK+4*f+2}")
                k(f"v_permlane32_swap_b32 v{PK+4*f+1}, v{PK+4*f+3}")
                k(f"buffer_store_dwordx4 {v(PK+4*f,4)}, v12, s[40:43], s31 offen offset:{32*f}{cfg.get('ostf', '')}")
        if kind == "wo":
            k(f"v_pk_add_f32 v[16:17], {v(XF,2)}, {v(XF+2,2)}")
            k(f"v_pk_add_f32 v[18:19], {v(XF+4,2)}, {v(XF+6,2)}")
            for d in range(4, 16, 2):
                k(f"v_pk_add_f32 v[16:17], v[16:17], {v(XF+2*d,2)}")
                k(f"v_pk_add_f32 v[18:19], v[18:19], {v(XF+2*d+2,2)}")
            k("v_pk_add_f32 v[16:17], v[16:17], v[18:19]")
            k("v_add_f32 v20, v16, v17")
            half_reduce(k, 20, 16)
            k(f"v_mul_f32 v22, {hex(f2i(-1.0/64))}, v20")
            k("v_mov_b32 v16, 0")
            k("v_mov_b32 v17, 0")
            k("v_mov_b32 v18, 0")
            k("v_mov_b32 v19, 0")
            for d in range(16):
                k(f"v_pk_add_f32 {v(XF+2*d,2)}, {v(XF+2*d,2)}, v[22:23] op_sel_hi:[1,0]")
            for d in range(16):
                ac = 16 + 2 * (d % 2)
                k(f"v_pk_fma_f32 {v(ac,2)}, {v(XF+2*d,2)}, {v(XF+2*d,2)}, {v(ac,2)}")
            k("v_pk_add_f32 v[16:17], v[16:17], v[18:19]")
            k("v_add_f32 v21, v16, v17")
            half_reduce(k, 21, 16)
            k("v_lshlrev_b32 v12, 3, v14")
            k(f"s_lshl_b32 s35, s{NJ}, 14")
            k(f"s_add_u32 s35, s35, {WS_ST2}")
            k("v_cmp_gt_u32 vcc, 32, v0")
            k("s_and_saveexec_b64 s[38:39], vcc")
            k(f"buffer_store_dwordx2 v[20:21], v12, s[16:19], s35 offen{stf}")
    tick(k, 4)
    flush(k, 16, WV, 0)
    k.label(end)
    k("s_endpgm")
    return k


def gen_attn(name, o=None):
    o = dict(o or {})
    R, D, NSTG, STG = 4, 3, 16, 16384
    out_off = o.get("out", WS_O)
    k = K(name, 256, 512, lds=82 * 1024, vgpr=176, sgpr=64)
    end = exit_guard(k, 256)
    k(f"s_load_dwordx2 s[6:7], s[0:1], {KA_WS}")
    k(f"s_load_dwordx2 s[40:41], s[0:1], {KA_WO}")
    k(f"s_load_dwordx4 s[44:47], s[0:1], {KA_W1}")
    HD, QB, WV = 20, 21, 22
    k("v_lshrrev_b32 v1, 6, v0")
    k("v_and_b32 v0, 63, v0")
    k("s_and_b32 s20, s2, 7")
    k("s_lshl_b32 s20, s20, 2")
    k("s_bfe_u32 s21, s2, 0x20003")
    k("s_add_u32 s20, s20, s21")
    k(f"v_readfirstlane_b32 s{WV}, v1")
    k("s_lshr_b32 s21, s2, 5")
    k("s_lshl_b32 s21, s21, 3")
    VL = 2
    k(f"v_lshlrev_b32 v{VL}, 4, v0")
    k(f"s_add_u32 s{QB}, s21, s{WV}")
    Sr = lambda b: 16 + 16 * b
    Pr = lambda b: 48 + 8 * b
    Or = lambda b: 64 + 16 * b
    Lr = lambda b: 96 + 4 * b
    CI, Q, KR, VR, ONE, M, T0 = 104, 120, 128, 136, 144, 148, 150
    CB = lambda b: 156 + 4 * b
    VK, VV, VC = 3, 4, 7
    OFFS, THR = 64.0, 2.0 ** 40
    SKG, SVG, SL, STEP, SCS, SCD, CLD, CSZ = 24, 25, 26, 27, 37, 52, 53, 54
    KVSZ = 3 * 0x400000
    k(f"s_lshl_b32 s23, s{HD}, 17")
    k(f"s_lshl_b32 s28, s{WV}, 10")
    k("s_add_u32 s23, s23, s28")
    k(f"s_add_u32 s{SKG}, s23, {WS_K-WS_Q}")
    k(f"s_add_u32 s{SVG}, s23, {WS_V-WS_Q}")
    k(f"s_mov_b32 s{SL}, s28")
    k(f"s_lshl_b32 s30, s{HD}, 17")
    k(f"s_lshl_b32 s31, s{QB}, 11")
    k("s_add_u32 s30, s30, s31")
    k("s_waitcnt lgkmcnt(0)")
    tick(k, 0)
    k.srd_off(8, 6, WS_Q, KVSZ)

    def dma_k():
        return [f"s_mov_b32 m0, s{SL}", f"s_add_u32 s29, s{SL}, 8192",
                f"buffer_load_dwordx4 v{VL}, s[8:11], s{SKG} offen lds",
                f"s_add_u32 s{SKG}, s{SKG}, 8192"]
    def dma_v():
        return ["s_mov_b32 m0, s29", f"s_add_u32 s{SL}, s{SL}, {STG}",
                f"buffer_load_dwordx4 v{VL}, s[8:11], s{SVG} offen lds",
                f"s_add_u32 s{SVG}, s{SVG}, 8192", f"s_and_b32 s{SL}, s{SL}, {R*STG-1}"]
    def cp_store(b):
        return [f"s_sub_u32 s55, s{STEP}, 2", "s_cmp_lt_u32 s55, 8", "s_cselect_b32 s50, 8192, 0",
                f"buffer_store_dwordx4 {v(CB(b),4)}, v{VL}, s[48:51], s{SCD} offen sc0 sc1",
                "s_cselect_b32 s55, 1024, 0", f"s_add_u32 s{SCD}, s{SCD}, s55"]
    def cp_load(b):
        return [f"s_cmp_lt_u32 s{STEP}, 8", f"s_cselect_b32 s18, s{CSZ}, 0",
                f"buffer_load_dwordx4 {v(CB(b),4)}, v{VC}, s[16:19], s{SCS} offen nt",
                f"s_cselect_b32 s55, s{CLD}, 0", f"s_add_u32 s{SCS}, s{SCS}, s55",
                f"s_add_u32 s{STEP}, s{STEP}, 1",
                f"s_cmp_lt_u32 s{STEP}, {NSTG-D+1}", f"s_cselect_b32 s10, {hex(KVSZ)}, 0"]
    def emit(lst):
        for x in lst:
            k(x)
    emit(dma_k())
    k(f"buffer_load_dwordx4 {v(Q,4)}, v{VL}, s[8:11], s30 offen")
    k(f"buffer_load_dwordx4 {v(Q+4,4)}, v{VL}, s[8:11], s30 offen offset:1024")
    emit(dma_v())
    k.srd_off(12, 6, out_off, ACT_BYTES)
    k("s_lshl_b32 s38, s2, 3")
    k(f"s_add_u32 s38, s38, s{WV}")
    k("s_lshl_b32 s39, s38, 13")
    k(f"s_add_u32 s39, s39, {hex(WS_WT)}")
    k("s_add_u32 s48, s6, s39")
    k("s_addc_u32 s49, s7, 0")
    k("s_mov_b32 s50, 0")
    k("s_mov_b32 s51, 0x20000")
    k("s_movk_i32 s42, 2048")
    k("s_cmp_ge_u32 s38, 256")
    k("s_cselect_b32 s40, s44, s40")
    k("s_cselect_b32 s41, s45, s41")
    k("s_cselect_b32 s39, 256, 0")
    k(f"s_cselect_b32 s42, {F_*2}, s42")
    k("s_sub_u32 s39, s38, s39")
    k("s_lshr_b32 s43, s39, 4")
    k("s_and_b32 s39, s39, 15")
    k("s_sub_u32 s56, s38, 1152")
    k(f"s_mul_hi_u32 s57, s56, {hex(-(-(1 << 32) // 56))}")
    k("s_mul_i32 s58, s57, 56")
    k("s_sub_u32 s56, s56, s58")
    k("s_cmp_ge_u32 s38, 1152")
    k("s_cselect_b32 s40, s46, s40")
    k("s_cselect_b32 s41, s47, s41")
    k("s_cselect_b32 s42, 2048, s42")
    k("s_cselect_b32 s43, s57, s43")
    k("s_cselect_b32 s39, s56, s39")
    k("s_mul_i32 s39, s39, s42")
    k("s_lshl_b32 s39, s39, 6")
    k("s_lshl_b32 s43, s43, 7")
    k("s_add_u32 s39, s39, s43")
    k("s_add_u32 s16, s40, s39")
    k("s_addc_u32 s17, s41, 0")
    k("s_mov_b32 s18, 0")
    k("s_mov_b32 s19, 0x20000")
    k(f"s_mul_i32 s{CSZ}, s42, 63")
    k(f"s_add_u32 s{CSZ}, s{CSZ}, 128")
    k(f"s_lshl_b32 s{CLD}, s42, 3")
    k(f"s_mov_b32 s{SCS}, 0")
    k(f"s_mov_b32 s{SCD}, 0")
    k(f"s_mov_b32 s{STEP}, 0")
    k("v_lshrrev_b32 v5, 3, v0")
    k(f"v_mul_lo_u32 v{VC}, v5, s42")
    k("v_and_b32 v5, 7, v0")
    k("v_bfe_u32 v6, v0, 4, 1")
    k("v_lshlrev_b32 v6, 2, v6")
    k("v_xor_b32 v5, v5, v6")
    k(f"v_lshl_add_u32 v{VC}, v5, 4, v{VC}")
    k("v_bfe_u32 v5, v0, 2, 1")
    k("v_bfe_u32 v6, v0, 4, 1")
    k("v_cmp_eq_u32 vcc, v5, v6")
    k("v_mov_b32 v5, 0x3f803f80")
    k("s_nop 0")
    k(f"v_cndmask_b32 v{ONE}, 0, v5, vcc")
    for i in range(1, 4):
        k(f"v_mov_b32 v{ONE+i}, v{ONE}")
    for r in range(16):
        k(f"v_mov_b32 v{Or(0)+r}, 0")
    for r in range(4):
        k(f"v_mov_b32 v{Lr(0)+r}, 0")
    for r in range(8):
        k(f"v_mov_b32 v{CB(0)+r}, 0")
    THS, SGB, IT = 32, 33, 34
    k(f"s_mov_b32 s{THS}, {hex(f2i(THR))}")
    k(f"s_mov_b32 s{SGB}, 0")
    k(f"s_mov_b32 s{IT}, 0")
    k(f"v_mov_b32 v{VK}, v{VL}")
    tick(k, 1)
    k("s_waitcnt vmcnt(0)")
    tick(k, 2)
    k("s_barrier")
    tick(k, 3)

    def kread(addr, tl, dst=KR):
        return [f"ds_read_b128 {v(dst+4*f,4)}, v{addr} offset:{tl*2048+f*1024}" for f in range(2)]
    def vread(addr, tl):
        return [f"ds_read_b128 {v(VR+4*f,4)}, v{addr} offset:{8192+tl*2048+f*1024}" for f in range(2)]
    def qk(sb, c0, kr=KR):
        return [f"v_mfma_f32_32x32x16_bf16 {v(sb,16)}, {v(kr,4)}, {v(Q,4)}, {c0}",
                f"v_mfma_f32_32x32x16_bf16 {v(sb,16)}, {v(kr+4,4)}, {v(Q+4,4)}, {v(sb,16)}"]
    def pv(pb, od, oc):
        return [f"v_mfma_f32_32x32x16_bf16 {v(od,16)}, {v(VR,4)}, {v(pb,4)}, {v(oc,16)}",
                f"v_mfma_f32_32x32x16_bf16 {v(od,16)}, {v(VR+4,4)}, {v(pb+4,4)}, {v(od,16)}"]
    def sm(pb, ld, lc):
        return [f"v_mfma_f32_16x16x32_bf16 {v(ld,4)}, {v(ONE,4)}, {v(pb,4)}, {v(lc,4)}",
                f"v_mfma_f32_16x16x32_bf16 {v(ld,4)}, {v(ONE,4)}, {v(pb+4,4)}, {v(ld,4)}"]
    def tilemax(sb, dst):
        k(f"v_max3_f32 v{dst}, v{sb}, v{sb+1}, v{sb+2}")
        k(f"v_max3_f32 v{dst+1}, v{sb+3}, v{sb+4}, v{sb+5}")
        for r in range(6, 14, 4):
            k(f"v_max3_f32 v{dst}, v{dst}, v{sb+r}, v{sb+r+1}")
            k(f"v_max3_f32 v{dst+1}, v{dst+1}, v{sb+r+2}, v{sb+r+3}")
        k(f"v_max3_f32 v{dst}, v{dst}, v{sb+14}, v{sb+15}")
        k(f"v_max_f32 v{dst}, v{dst}, v{dst+1}")
        half_reduce(k, dst, dst + 1, "v_max_f32")
    def expcvt(sb, pb):
        for r in range(16):
            k(f"v_exp_f32 v{sb+r}, v{sb+r}")
        k("s_nop 0")
        for d in range(8):
            k(f"v_cvt_pk_bf16_f32 v{pb+d}, v{sb+2*d}, v{sb+2*d+1}")
    def set_ci():
        k(f"v_sub_f32 v{CI}, 0, v{M}")
        for r in range(1, 16):
            k(f"v_mov_b32 v{CI+r}, v{CI}")

    entry = [k.newlabel("it1"), k.newlabel("it5")]
    slow = [k.newlabel("slow0"), k.newlabel("slow1")]
    emit(kread(VK, 0))
    emit(kread(VK, 1, VR))
    emit(dma_k()); emit(dma_v())
    k("s_waitcnt lgkmcnt(2)")
    emit(qk(Sr(0), "0"))
    emit(kread(VK, 2))
    emit(dma_k()); emit(dma_v())
    emit(cp_store(0)); emit(cp_load(0))
    tilemax(Sr(0), T0)
    k(f"v_add_f32 v{M}, {hex(f2i(OFFS))}, v{T0}")
    set_ci()
    k(f"v_mov_b32 v{VV}, v{VL}")
    k("s_waitcnt lgkmcnt(2)")
    emit(qk(Sr(1), v(CI, 16), VR))
    emit(vread(VV, 0))
    for r in range(16):
        k(f"v_sub_f32 v{Sr(0)+r}, v{Sr(0)+r}, v{M}")
    expcvt(Sr(0), Pr(0))
    k(f"s_branch {entry[0]}")

    def restart():
        set_ci()
        k(f"v_add_u32 v{VK}, s{SGB}, v{VL}")
        k(f"v_add_u32 v{VV}, s{SGB}, v{VL}")
        emit(kread(VK, 0))
        k("s_waitcnt lgkmcnt(0)")
        emit(qk(Sr(0), v(CI, 16)))
        emit(kread(VK, 1))
        k("s_waitcnt lgkmcnt(0)")
        emit(qk(Sr(1), v(CI, 16)))
        emit(kread(VK, 2))
        emit(vread(VV, 0))
        k("s_nop 7")
        expcvt(Sr(0), Pr(0))

    loop = k.newlabel("loop")
    tail = k.newlabel("tail")
    k.label(loop)
    sched = o.get("sched", "W q0 e e e q1 K e c e e W p0 c e e c s0 e c e p1 V e c e e s1 c e e c e n c").split()
    assert sched.count("e") == 16 and sched.count("c") == 8
    prio = o.get("prio", 1)
    for it in range(1, 9):
        t = it
        g_prev = ((t - 1) // 4) % 2
        first_of_group = ((t - 1) % 4 == 0)
        od = Or(1 - g_prev)
        oc = Or(g_prev) if first_of_group else od
        ld_ = Lr(1 - g_prev)
        lc = Lr(g_prev) if first_of_group else ld_
        if first_of_group:
            after_s1 = len(sched) - 1 - sched.index("s1")
            k(f"s_add_u32 s{SGB}, s{SGB}, {STG}")
            k(f"s_and_b32 s{SGB}, s{SGB}, {R*STG-1}")
            if after_s1 + 2 < 8:
                k(f"s_nop {8 - after_s1 - 2 - 1}")
            k(f"v_cmp_nge_f32 vcc, s{THS}, v{Lr(g_prev)}")
            k(f"s_cbranch_vccnz {slow[1-g_prev]}")
            k.label(entry[g_prev])
        if it == 8:
            k(f"s_cmp_eq_u32 s{IT}, 7")
            k(f"s_cbranch_scc1 {tail}")
        sb, pb = Sr(t % 2), Pr(t % 2)
        snext = Sr((t + 1) % 2)
        pprev = Pr((t - 1) % 2)
        mf = {}
        mf["q0"], mf["q1"] = qk(snext, v(CI, 16))
        mf["p0"], mf["p1"] = pv(pprev, od, oc)
        mf["s0"], mf["s1"] = sm(pprev, ld_, lc)
        ex = [f"v_exp_f32 v{sb+r}, v{sb+r}" for r in range(16)]
        cv = [f"v_cvt_pk_bf16_f32 v{pb+d}, v{sb+2*d}, v{sb+2*d+1}" for d in range(8)]
        ph = (t + 2) % 4
        cbuf = 1 if it in (2, 3, 4) else 0
        extras = {}
        if ph == 0:
            extras = {7: dma_k(), 12: dma_v()}
        elif ph == 1:
            extras = {4: cp_store(cbuf), 11: cp_load(cbuf)}
        ne = nc = 0
        prev = None
        for tok in sched:
            if tok == "W":
                k("s_waitcnt lgkmcnt(2)")
            elif tok in mf:
                k(mf[tok])
            elif tok == "e":
                k(ex[ne]); ne += 1
                if ne in extras:
                    emit(extras[ne])
            elif tok == "c":
                assert ne >= 2 * nc + 2 and not (prev == "e" and ne == 2 * nc + 2), "cvt too early"
                k(cv[nc]); nc += 1
            elif tok == "n":
                k("s_nop 0")
            elif tok == "K":
                if ph == 0:
                    k(f"v_add_u32 v{VK}, {STG}, v{VK}")
                    k(f"v_and_b32 v{VK}, {R*STG-1}, v{VK}")
                    k("s_waitcnt vmcnt(3)")
                    k("s_barrier")
                if prio:
                    k(f"s_setprio {3-ph}")
                emit(kread(VK, ph))
            elif tok == "V":
                if t % 4 == 0:
                    k(f"v_add_u32 v{VV}, {STG}, v{VV}")
                    k(f"v_and_b32 v{VV}, {R*STG-1}, v{VV}")
                emit(vread(VV, t % 4))
            prev = tok
    k(f"s_add_u32 s{IT}, s{IT}, 1")
    k(f"s_branch {loop}")

    k.label(tail)
    tick(k, 4)
    k("s_waitcnt lgkmcnt(0)")
    emit(sm(Pr(1), Lr(0), Lr(0)) + pv(Pr(1), Or(0), Or(0)))
    k(f"s_lshr_b32 s30, s{QB}, 2")
    k("s_lshl_b32 s30, s30, 18")
    k(f"s_lshl_b32 s31, s{HD}, 13")
    k("s_add_u32 s30, s30, s31")
    k(f"s_and_b32 s31, s{QB}, 3")
    k("s_lshl_b32 s31, s31, 10")
    k("s_add_u32 s30, s30, s31")
    k("s_add_u32 s31, s30, 4096")
    k(f"v_cmp_nge_f32 vcc, s{THS}, v{Lr(0)}")
    k(f"s_add_u32 s{SGB}, s{SGB}, {STG}")
    k(f"s_and_b32 s{SGB}, s{SGB}, {R*STG-1}")
    k(f"s_mov_b32 s{IT}, 8")
    k(f"s_cbranch_vccnz {slow[1]}")
    fin = k.newlabel("fin")
    k.label(fin)
    k(f"v_rcp_f32 v{T0}, v{Lr(0)}")
    k("s_nop 1")
    for r in range(0, 16, 2):
        k(f"v_pk_mul_f32 {v(Or(0)+r,2)}, {v(Or(0)+r,2)}, {v(T0,2)} op_sel_hi:[1,0]")
    for d in range(8):
        k(f"v_cvt_pk_bf16_f32 v{Pr(0)+d}, v{Or(0)+2*d}, v{Or(0)+2*d+1}")
    k(f"buffer_store_dwordx4 {v(Pr(0),4)}, v{VL}, s[12:15], s30 offen{STF}")
    k(f"buffer_store_dwordx4 {v(Pr(0)+4,4)}, v{VL}, s[12:15], s31 offen{STF}")
    tick(k, 5)
    k("s_waitcnt vmcnt(0)")
    flush(k, 16, WV, 0)
    flush(k, 16, WV, 7, role=1)
    k("s_endpgm")

    for g in range(2):
        k.label(slow[g])
        k("s_waitcnt lgkmcnt(0)")
        k("s_nop 15")
        od, ld_ = Or(1 - g), Lr(1 - g)
        for r in range(16):
            k(f"v_mov_b32 v{od+r}, v{Or(g)+r}")
        for r in range(4):
            k(f"v_mov_b32 v{ld_+r}, v{Lr(g)+r}")
        k(f"s_sub_u32 s35, s{SGB}, {STG}")
        k(f"s_and_b32 s35, s35, {R*STG-1}")
        k(f"v_add_u32 v{VK}, s35, v{VL}")
        k("s_mov_b32 s36, 0")
        sl = k.newlabel("sl")
        k.label(sl)
        emit(kread(VK, 0) + vread(VK, 0))
        k("s_waitcnt lgkmcnt(0)")
        emit(qk(Sr(0), "0"))
        k("s_nop 15")
        tilemax(Sr(0), T0)
        k(f"v_add_f32 v{T0}, {hex(f2i(OFFS))}, v{T0}")
        k(f"v_max_f32 v{T0}, v{T0}, v{M}")
        k(f"v_sub_f32 v{T0+1}, v{M}, v{T0}")
        k(f"v_exp_f32 v{T0+1}, v{T0+1}")
        k(f"v_mov_b32 v{M}, v{T0}")
        for r in range(16):
            k(f"v_sub_f32 v{Sr(0)+r}, v{Sr(0)+r}, v{M}")
        for r in range(16):
            k(f"v_mul_f32 v{od+r}, v{od+r}, v{T0+1}")
        for r in range(4):
            k(f"v_mul_f32 v{ld_+r}, v{ld_+r}, v{T0+1}")
        expcvt(Sr(0), Pr(0))
        k("s_nop 1")
        emit(pv(Pr(0), od, od) + sm(Pr(0), ld_, ld_))
        k("s_nop 15")
        k(f"v_add_u32 v{VK}, 2048, v{VK}")
        k("s_add_u32 s36, s36, 1")
        k("s_cmp_lt_u32 s36, 4")
        k(f"s_cbranch_scc1 {sl}")
        if g == 1:
            k(f"s_cmp_eq_u32 s{IT}, 8")
            k(f"s_cbranch_scc1 {fin}")
        restart()
        k(f"s_branch {entry[1-g]}")
    k.label(end)
    k("s_endpgm")
    return k


def kernels(o=None):
    o = o or {}
    return [gen_mod("mod_kernel", o.get("mod")), gen_ln("ln_kernel", o.get("ln")), gen_gemm("qkv_kernel", "qkv", o.get("qkv")),
            gen_attn("attn_kernel", o.get("attn")), gen_gemm("wo_kernel", "wo", o.get("wo")),
            gen_gemm("w1_kernel", "w1", o.get("w1")), gen_gemm("w2_kernel", "w2", o.get("w2"))]


def build():
    ks = kernels()
    return assemble_file(ks, ks)


if __name__ == "__main__":
    out = sys.argv[1] if len(sys.argv) > 1 else "adaLN_cond__softmax_full_mha__dense_activation_relu__prompt.s"
    if len(sys.argv) > 2 and sys.argv[2] == "prof":
        PROFILE = True
    open(out, "w").write(build())
    print("wrote", out)
```

```python
import sys, os, struct
sys.path.insert(0, os.path.dirname(os.path.abspath(__file__)))
from asmlib import K, v, s, a, assemble_file

S_, D_, F_, NH = 2048, 1024, 3584, 32
KA_X, KA_WQKV, KA_WO, KA_BX, KA_W1, KA_W2, KA_C, KA_WMOD, KA_OUT, KA_DBG, KA_WS = [8 * i for i in range(11)]
WS_MODP = 0x000000
WS_RSTD = 0x020000
WS_SILU = 0x024000
WS_ST1 = 0x028000
WS_FLAG = 0x030000
WS_UVP = 0x080000
WS_ST2 = 0x040000
WS_SMALL = 0x100000
WS_XT = 0x100000
WS_Q = 0x500000
WS_K = 0x900000
WS_V = 0xD00000
WS_O = 0x1100000
WS_X2 = 0x1500000
WS_Y2 = 0x1900000
WS_H = 0x1D00000
WS_H1 = 0x2B00000
WS_PART = 0x4800000
WS_WT = 0x3000000
ACT_BYTES = S_ * D_ * 2
H_BYTES = S_ * F_ * 2
LOG2E = 1.4426950408889634
VSCALE = 2.0 ** 32
MPS = 6144 * 4


def f2i(x):
    return struct.unpack("<I", struct.pack("<f", x))[0]


PROFILE = False
STF = " sc0 sc1"
WS_PROF = 0x8000000
_kidx = {}
NST = 7


def exit_guard(k, nwg):
    end = k.newlabel("end")
    if PROFILE:
        k("s_memrealtime s[80:81]")
        k("s_memtime s[82:83]")
    k(f"s_cmp_ge_u32 s2, {nwg}")
    k(f"s_cbranch_scc1 {end}")
    if PROFILE:
        _kidx.setdefault(k.name, len(_kidx))
        k(f"s_load_dwordx2 s[84:85], s[0:1], {KA_WS}")
        k("s_mov_b32 s90, s2")
        for i in range(NST):
            k(f"s_mov_b32 s{64+2*i}, 0")
        k.sgpr = 96
    return end


def tick(k, i):
    if PROFILE:
        k(f"s_memtime s[{64+2*i}:{65+2*i}]")


def flush(k, tmpv, wave_sgpr=None, wave=0, role=0):
    if not PROFILE:
        return
    sk = k.newlabel("st")
    if wave_sgpr is not None:
        k(f"s_cmp_lg_u32 s{wave_sgpr}, {wave}")
        k(f"s_cbranch_scc1 {sk}")
    k("s_mov_b64 exec, -1")
    k("s_waitcnt vmcnt(0)")
    k("s_memrealtime s[86:87]")
    k("s_memtime s[88:89]")
    k("s_waitcnt lgkmcnt(0)")
    k(f"s_add_u32 s92, s84, {hex(WS_PROF + _kidx[k.name] * 0x20000)}")
    k("s_addc_u32 s93, s85, 0")
    k("s_mov_b32 s94, 0x20000")
    k("s_mov_b32 s95, 0x20000")
    k("s_lshl_b32 s91, s90, 7")
    srcs = [80, 82, 86, 88] + [64 + 2 * i for i in range(NST)] + [64]
    for j, sr in enumerate(srcs):
        k(f"v_mov_b32 v{tmpv+j}, s{sr}")
    k(f"v_mov_b32 v{tmpv+12}, 0")
    for j in range(3):
        k(f"buffer_store_dwordx4 {v(tmpv+4*j,4)}, v{tmpv+12}, s[92:95], s91 offen offset:{64*role+16*j}")
    k.label(sk)


def half_reduce(k, r, tmp, op="v_add_f32"):
    k(f"v_mov_b32 v{tmp}, v{r}")
    k("s_nop 1")
    k(f"v_permlane32_swap_b32 v{r}, v{tmp}")
    k("s_nop 1")
    k(f"{op} v{r}, v{r}, v{tmp}")


def row8_reduce(k, r, tmp):
    k("s_nop 1")
    k(f"v_add_f32_dpp v{r}, v{r}, v{r} row_ror:8 row_mask:0xf bank_mask:0xf")
    k(f"v_mov_b32 v{tmp}, v{r}")
    k("s_nop 1")
    k(f"v_permlane16_swap_b32 v{r}, v{tmp}")
    k("s_nop 1")
    k(f"v_add_f32 v{r}, v{r}, v{tmp}")
    half_reduce(k, r, tmp)


def round_bf16(k, r):
    k(f"v_cvt_pk_bf16_f32 v{r}, v{r}, v{r}")
    k(f"v_and_b32 v{r}, 0xffff0000, v{r}")


def gemv_addr(k, ld, task):
    k(f"s_and_b32 s22, s{task}, 3")
    k(f"s_lshr_b32 s23, s{task}, 2")
    k("v_and_b32 v1, 7, v0")
    k("v_lshrrev_b32 v2, 3, v0")
    k(f"v_mul_u32_u24 v3, {ld}, v2")
    k("v_lshl_add_u32 v3, v1, 4, v3")
    k(f"s_mul_i32 s24, s22, {256*ld}")
    k("s_lshl_b32 s25, s23, 7")
    k("s_add_u32 s24, s24, s25")


def gemv_loads(k, ld, W):
    for i in range(8):
        k(f"buffer_load_dwordx4 {v(W+4*i,4)}, v3, s[8:11], s24 offen nt")
        if i < 7:
            k(f"s_add_u32 s24, s24, {32*ld}")


GPITCH = 80


def gemv_finish(k, nvec, W, C, T, A, ldsoff, end, out_base, part_stride, vec_stride, hook=None):
    k("v_lshrrev_b32 v5, 4, v0")
    k("v_lshlrev_b32 v5, 2, v5")
    k(f"v_mul_u32_u24 v6, {8*GPITCH}, v1")
    k("v_add_u32 v5, v5, v6")
    for i in range(8):
        k(f"s_waitcnt vmcnt({7-i})")
        for d in range(4):
            src = W + 4 * i + d
            k(f"v_lshlrev_b32 v{T}, 16, v{src}")
            k(f"v_and_b32 v{T+1}, 0xffff0000, v{src}")
            op = "v_mul_f32" if i == 0 else "v_fmac_f32"
            for vec in range(nvec):
                k(f"{op} v{A+8*vec+2*d}, v{T}, v{C+8*vec+i}")
                k(f"{op} v{A+8*vec+2*d+1}, v{T+1}, v{C+8*vec+i}")
    k("s_nop 1")
    for r in range(8 * nvec):
        k(f"v_add_f32_dpp v{A+r}, v{A+r}, v{A+r} row_ror:8 row_mask:0xf bank_mask:0xf")
    for r in range(8 * nvec):
        k(f"ds_write_b32 v5, v{A+r} offset:{ldsoff + (r//8)*64*GPITCH + (r%8)*GPITCH}")
    if hook:
        hook()
    k("s_waitcnt lgkmcnt(0)")
    k("s_barrier")
    k(f"v_cmp_gt_u32 vcc, {64*nvec}, v0")
    k("s_and_saveexec_b64 s[30:31], vcc")
    k(f"s_cbranch_execz {end}")
    k(f"v_mul_u32_u24 v5, {GPITCH}, v0")
    for r in range(4):
        k(f"ds_read_b128 {v(8+4*r,4)}, v5 offset:{ldsoff+16*r}")
    k("v_and_b32 v2, 63, v0")
    k("v_lshlrev_b32 v2, 2, v2")
    if nvec == 2:
        k("v_lshrrev_b32 v3, 6, v0")
        k(f"v_mul_u32_u24 v3, {vec_stride}, v3")
        k("v_add_u32 v2, v2, v3")
    k(f"s_mul_i32 s24, s22, {part_stride}")
    k("s_lshl_b32 s25, s23, 8")
    k("s_add_u32 s24, s24, s25")
    k(f"s_add_u32 s24, s24, {out_base}")
    k("s_waitcnt lgkmcnt(0)")
    w = 16
    while w > 1:
        w //= 2
        for r in range(w):
            k(f"v_add_f32 v{8+r}, v{8+r}, v{8+w+r}")
    k(f"buffer_store_dword v8, v2, s[16:19], s24 offen")


def prefetch_qkv(k, task, flag="", nowait=False):
    k(f"s_load_dwordx2 s[4:5], s[0:1], {KA_WQKV}")
    k(f"s_lshl_b32 s3, s{task}, 15")
    k("v_lshlrev_b32 v1, 4, v0")
    k("s_waitcnt lgkmcnt(0)")
    k.srd(8, "s4", "s5", 1024 * 6144)
    for i in range(8):
        k(f"buffer_load_dwordx4 {v(8+4*i,4)}, v1, s[8:11], s3 offen{flag}")
        k("s_add_u32 s3, s3, 4096")
    if nowait:
        k("s_endpgm")
    k("s_waitcnt vmcnt(0)")


def prefetch_qkv_l2(k, task, flag=" nt"):
    k(f"s_load_dwordx2 s[4:5], s[0:1], {KA_WQKV}")
    k(f"s_bfe_u32 s22, s{task}, 0x20001")
    k("s_lshl_b32 s22, s22, 9")
    k(f"s_lshr_b32 s23, s{task}, 3")
    k(f"s_mul_hi_u32 s24, s23, {hex(-(-(1 << 32) // 3))}")
    k("s_mul_i32 s25, s24, 3")
    k("s_sub_u32 s25, s23, s25")
    k("s_lshl_b32 s25, s25, 11")
    k("s_add_u32 s22, s22, s25")
    k(f"s_mul_i32 s24, s24, {64*6144}")
    k("s_add_u32 s3, s22, s24")
    k("v_lshrrev_b32 v1, 5, v0")
    k("v_mul_u32_u24 v1, 6144, v1")
    k("v_and_b32 v2, 31, v0")
    k("v_lshl_add_u32 v1, v2, 4, v1")
    k("s_waitcnt lgkmcnt(0)")
    k.srd(8, "s4", "s5", 1024 * 6144)
    for i in range(8):
        k(f"buffer_load_dwordx4 {v(8+4*i,4)}, v1, s[8:11], s3 offen{flag}")
        k(f"s_add_u32 s3, s3, {8*6144}")
    k("s_waitcnt vmcnt(0)")


def gen_mod(name, o=None):
    o = o or {}
    NG, NX = 128, 256
    NPF = o.get("pf", 96)
    nwg = NG + NX + NPF
    k = K(name, nwg, 256, lds=64 * GPITCH, vgpr=80, sgpr=48)
    end = exit_guard(k, nwg)
    xr, pf = k.newlabel("xr"), k.newlabel("pf")
    if NPF:
        k(f"s_cmp_ge_u32 s2, {NG+NX}")
        k(f"s_cbranch_scc1 {pf}")
    k(f"s_load_dwordx2 s[20:21], s[0:1], {KA_WS}")
    k(f"s_cmp_ge_u32 s2, {NG}")
    k(f"s_cbranch_scc1 {xr}")
    k(f"s_load_dwordx4 s[4:7], s[0:1], {KA_C}")
    ld = 6144 * 2
    gemv_addr(k, ld, 2)
    k("v_lshlrev_b32 v4, 1, v2")
    k("s_lshl_b32 s25, s22, 9")
    k("s_waitcnt lgkmcnt(0)")
    k.srd(8, "s6", "s7", 1024 * ld)
    k.srd(12, "s4", "s5", 2048)
    W, C, T, A = 8, 40, 48, 56
    for i in range(8):
        k(f"buffer_load_ushort v{C+i}, v4, s[12:15], s25 offen offset:{64*i}")
    gemv_loads(k, ld, W)
    k.srd(16, "s20", "s21", WS_SMALL)
    k("s_waitcnt vmcnt(8)")
    for i in range(8):
        k(f"v_lshlrev_b32 v{C+i}, 16, v{C+i}")
    for i in range(8):
        k(f"v_mul_f32 v{T+i}, {hex(f2i(-LOG2E))}, v{C+i}")
    for i in range(8):
        k(f"v_exp_f32 v{T+i}, v{T+i}")
    for i in range(8):
        k(f"v_add_f32 v{T+i}, 1.0, v{T+i}")
    for i in range(8):
        k(f"v_rcp_f32 v{T+i}, v{T+i}")
    for i in range(8):
        k(f"v_mul_f32 v{C+i}, v{C+i}, v{T+i}")
    for i in range(8):
        round_bf16(k, C + i)

    def silu_store():
        sk = k.newlabel("nosilu")
        k("s_cmp_lg_u32 s23, 0")
        k(f"s_cbranch_scc1 {sk}")
        k("s_lshl_b32 s25, s22, 9")
        k(f"s_add_u32 s25, s25, {WS_SILU}")
        for i in range(8):
            k(f"buffer_store_short_d16_hi v{C+i}, v4, s[16:19], s25 offen offset:{64*i}")
        k.label(sk)
    gemv_finish(k, 1, W, C, T, A, 0, end, WS_MODP, MPS, 0, silu_store)
    flush(k, 64)
    k("s_endpgm")

    k.label(xr)
    k(f"s_load_dwordx2 s[4:5], s[0:1], {KA_X}")
    k(f"s_sub_u32 s3, s2, {NG}")
    k("s_and_b32 s22, s3, 7")
    k("s_lshr_b32 s23, s3, 5")
    k("s_lshl_b32 s23, s23, 3")
    k("s_add_u32 s22, s22, s23")
    k("s_lshl_b32 s22, s22, 2")
    k("s_bfe_u32 s23, s3, 0x20003")
    k("s_add_u32 s22, s22, s23")
    k("v_lshrrev_b32 v1, 5, v0")
    k("v_and_b32 v2, 31, v0")
    k("v_lshlrev_b32 v3, 4, v2")
    k("v_lshl_add_u32 v3, v1, 11, v3")
    k("s_lshl_b32 s23, s22, 14")
    k("s_waitcnt lgkmcnt(0)")
    k.srd(8, "s4", "s5", ACT_BYTES)
    X, XF = 8, 24
    for i in range(4):
        k(f"buffer_load_dwordx4 {v(X+4*i,4)}, v3, s[8:11], s23 offen offset:{512*i}{o.get('xflag', ' nt')}")
    k.srd(16, "s20", "s21", WS_SMALL)
    k("v_lshlrev_b32 v4, 3, v1")
    k("s_lshl_b32 s22, s22, 6")
    k(f"s_add_u32 s22, s22, {WS_ST1}")

    def red32(r, tmp):
        for rot in (1, 2, 4, 8):
            k("s_nop 1")
            k(f"v_add_f32_dpp v{r}, v{r}, v{r} row_ror:{rot} row_mask:0xf bank_mask:0xf")
        k(f"v_mov_b32 v{tmp}, v{r}")
        k("s_nop 1")
        k(f"v_permlane16_swap_b32 v{r}, v{tmp}")
        k("s_nop 1")
        k(f"v_add_f32 v{r}, v{r}, v{tmp}")
    for i in range(4):
        k(f"s_waitcnt vmcnt({3-i})")
        for d in range(4 * i, 4 * i + 4):
            k(f"v_lshlrev_b32 v{XF+2*d}, 16, v{X+d}")
            k(f"v_and_b32 v{XF+2*d+1}, 0xffff0000, v{X+d}")
        for d in range(4 * i, 4 * i + 4):
            ac = 58 + 2 * (d % 2)
            if d < 2:
                k(f"v_mov_b32 v{ac}, v{XF+2*d}")
                k(f"v_mov_b32 v{ac+1}, v{XF+2*d+1}")
            else:
                k(f"v_pk_add_f32 {v(ac,2)}, {v(ac,2)}, {v(XF+2*d,2)}")
    k("v_pk_add_f32 v[58:59], v[58:59], v[60:61]")
    k("v_add_f32 v58, v58, v59")
    red32(58, 59)
    k(f"v_mul_f32 v56, {hex(f2i(-1.0/1024))}, v58")
    for d in range(16):
        k(f"v_pk_add_f32 {v(XF+2*d,2)}, {v(XF+2*d,2)}, v[56:57] op_sel_hi:[1,0]")
    for d in range(16):
        ac = 58 + 2 * (d % 2)
        if d < 2:
            k(f"v_pk_mul_f32 {v(ac,2)}, {v(XF+2*d,2)}, {v(XF+2*d,2)}")
        else:
            k(f"v_pk_fma_f32 {v(ac,2)}, {v(XF+2*d,2)}, {v(XF+2*d,2)}, {v(ac,2)}")
    k("v_pk_add_f32 v[58:59], v[58:59], v[60:61]")
    k("v_add_f32 v58, v58, v59")
    red32(58, 59)
    k(f"v_mov_b32 v62, {hex(f2i(1e-5))}")
    k(f"v_fmac_f32 v62, {hex(f2i(1.0/1024))}, v58")
    k("v_rsq_f32 v62, v62")
    k("v_cmp_eq_u32 vcc, 0, v2")
    k("v_mul_f32 v63, v56, v62")
    k("s_and_saveexec_b64 s[30:31], vcc")
    k("buffer_store_dwordx2 v[62:63], v4, s[16:19], s22 offen")
    flush(k, 64)
    k("s_endpgm")
    if NPF:
        k.label(pf)
        k(f"s_sub_u32 s3, s2, {NG+NX}")
        prefetch_qkv(k, 3, nowait=o.get("nowait"))
        flush(k, 64)
    k.label(end)
    k("s_endpgm")
    return k


def sum4_round(k, b, n, plus1):
    for e in range(n):
        k(f"v_add_f32 v{b+e}, v{b+e}, v{b+n+e}")
        k(f"v_add_f32 v{b+2*n+e}, v{b+2*n+e}, v{b+3*n+e}")
    for e in range(n):
        k(f"v_add_f32 v{b+e}, v{b+e}, v{b+2*n+e}")
    for e in range(n):
        round_bf16(k, b + e)
    if plus1:
        for e in range(n):
            k(f"v_add_f32 v{b+e}, 1.0, v{b+e}")
        for e in range(n):
            round_bf16(k, b + e)


def gen_ln(name, o=None):
    o = o or {}
    NX, NPF = 256, o.get("pf", 96)
    nwg = NX + NPF
    k = K(name, nwg, 256, lds=2048, vgpr=128, sgpr=48)
    end = exit_guard(k, nwg)
    pf = k.newlabel("pf")
    if NPF:
        k(f"s_cmp_ge_u32 s2, {NX}")
        k(f"s_cbranch_scc1 {pf}")
    k(f"s_load_dwordx2 s[20:21], s[0:1], {KA_WS}")
    k(f"s_load_dwordx2 s[4:5], s[0:1], {KA_X}")
    k("s_and_b32 s22, s2, 7")
    k("s_lshr_b32 s23, s2, 5")
    k("s_lshl_b32 s23, s23, 3")
    k("s_add_u32 s22, s22, s23")
    k("s_bfe_u32 s23, s2, 0x20003")
    k("v_and_b32 v1, 7, v0")
    k("v_lshrrev_b32 v3, 6, v0")
    k("v_lshl_add_u32 v1, v3, 3, v1")
    k("v_bfe_u32 v6, v0, 4, 2")
    k("v_bfe_u32 v7, v0, 3, 1")
    k("v_lshlrev_b32 v5, 5, v6")
    k("v_lshl_add_u32 v5, v7, 3, v5")
    k("v_lshl_add_u32 v5, v1, 11, v5")
    k("s_lshl_b32 s24, s22, 16")
    k("s_lshl_b32 s25, s23, 9")
    k("s_add_u32 s24, s24, s25")
    k("v_lshlrev_b32 v4, 7, v6")
    k("v_lshl_add_u32 v4, v7, 6, v4")
    k("v_lshlrev_b32 v6, 12, v6")
    k("v_lshl_add_u32 v6, v7, 9, v6")
    k("v_lshl_add_u32 v6, v1, 4, v6")
    k("v_and_b32 v2, 127, v0")
    k("v_lshlrev_b32 v2, 3, v2")
    k("v_lshrrev_b32 v7, 7, v0")
    k("v_xor_b32 v3, 1, v7")
    k("v_lshl_add_u32 v2, v3, 12, v2")
    k("s_lshl_b32 s26, s23, 10")
    k("v_lshlrev_b32 v1, 3, v1")
    k("s_lshl_b32 s27, s22, 8")
    k(f"s_add_u32 s27, s27, {WS_ST1}")
    k("s_waitcnt lgkmcnt(0)")
    k.srd(12, "s20", "s21", WS_SMALL)
    k.srd(8, "s4", "s5", ACT_BYTES)
    X, XF, P0, PP, ST = 8, 24, 64, 56, 126
    for part in range(4):
        k(f"buffer_load_dwordx2 {v(PP+2*part,2)}, v2, s[12:15], s26 offen")
        k(f"s_add_u32 s26, s26, {MPS}")
    k(f"buffer_load_dwordx2 {v(ST,2)}, v1, s[12:15], s27 offen")
    for i in range(4):
        for j in range(2):
            k(f"buffer_load_dwordx2 {v(X+4*i+2*j,2)}, v5, s[8:11], s24 offen offset:{128*i+16*j}{o.get('xflag', '')}")
    k.srd_off(32, 20, WS_H1, ACT_BYTES)
    k("s_lshr_b32 s24, s22, 2")
    k("s_lshl_b32 s24, s24, 18")
    k("s_lshl_b32 s25, s23, 16")
    k("s_add_u32 s24, s24, s25")
    k("s_and_b32 s25, s22, 3")
    k("s_lshl_b32 s25, s25, 10")
    k("s_add_u32 s24, s24, s25")
    for i in range(1, 4):
        k(f"s_add_u32 s{24+i}, s24, {16384*i}")
    k("v_bfe_u32 v100, v0, 3, 4")
    k("v_lshlrev_b32 v100, 7, v100")
    k("v_bfe_u32 v101, v0, 1, 1")
    k("v_lshl_add_u32 v100, v101, 6, v100")
    k("v_lshl_add_u32 v100, v7, 5, v100")
    k("v_bfe_u32 v101, v0, 2, 1")
    k("v_lshl_add_u32 v100, v101, 4, v100")
    k("v_and_b32 v101, 1, v0")
    k("v_lshl_add_u32 v100, v101, 3, v100")
    k("v_cvt_f32_u32 v3, v3")
    k("s_waitcnt vmcnt(9)")
    sum4_round(k, PP, 2, False)
    for e in range(2):
        k(f"v_add_f32 v{PP+e}, v3, v{PP+e}")
    for e in range(2):
        round_bf16(k, PP + e)
    k(f"ds_write_b64 v100, {v(PP,2)}")
    k("s_waitcnt lgkmcnt(0)")
    k("s_barrier")
    for i in range(3):
        for q in range(4):
            k(f"ds_read_b128 {v(P0+16*i+4*q,4)}, v4 offset:{512*i+16*q}")
    for i in range(4):
        k(f"s_waitcnt vmcnt({6-2*i})" if i == 0 else f"s_waitcnt vmcnt({6-2*i})")
        for d in range(4 * i, 4 * i + 4):
            k(f"v_lshlrev_b32 v{XF+2*d}, 16, v{X+d}")
            k(f"v_and_b32 v{XF+2*d+1}, 0xffff0000, v{X+d}")
        for d in range(4 * i, 4 * i + 4):
            k(f"v_pk_fma_f32 {v(XF+2*d,2)}, {v(XF+2*d,2)}, {v(ST,2)}, {v(ST,2)} op_sel:[0,0,1] op_sel_hi:[1,0,1]")
    for i in range(4):
        pb = P0 + 16 * (i % 3)
        k(f"s_waitcnt lgkmcnt({[8, 8, 4, 0][i]})")
        for d in range(4):
            k(f"v_pk_fma_f32 {v(XF+8*i+2*d,2)}, {v(XF+8*i+2*d,2)}, {v(pb+2*d,2)}, {v(pb+8+2*d,2)}")
        if i == 0:
            for q in range(4):
                k(f"ds_read_b128 {v(P0+4*q,4)}, v4 offset:{512*3+16*q}")
        for d in range(4):
            k(f"v_cvt_pk_bf16_f32 v{X+4*i+d}, v{XF+8*i+2*d}, v{XF+8*i+2*d+1}")
        k(f"buffer_store_dwordx4 {v(X+4*i,4)}, v6, s[32:35], s{24+i} offen{STF}")
    k("v_mov_b32 v2, 0")
    k("v_lshlrev_b32 v3, 6, v0")
    k("s_lshl_b32 s24, s2, 7")
    k(f"s_add_u32 s24, s24, {WS_FLAG}")
    k("v_cmp_gt_u32 vcc, 2, v0")
    k("s_and_saveexec_b64 s[30:31], vcc")
    k(f"s_cbranch_execz {end}")
    k("buffer_store_dword v2, v3, s[12:15], s24 offen")
    flush(k, 64)
    k("s_endpgm")
    if NPF:
        k.label(pf)
        tot = 384 if o.get("l2") else 192
        k(f"s_add_u32 s3, s2, {(tot - NPF - NX) & 0xffffffff}")
        prefetch_qkv(k, 3, nowait=o.get("nowait"))
        flush(k, 64)
    k.label(end)
    k("s_endpgm")
    return k


def split_hilo(k, x, hi, lo):
    k(f"v_cvt_pk_bf16_f32 v{hi}, v{x}, v{x}")
    k(f"v_and_b32 v{hi}, 0xffff0000, v{hi}")
    k(f"v_sub_f32 v{lo}, v{x}, v{hi}")


def gen_gemm(name, kind, o=None):
    cfg = {
        "qkv": dict(Ktot=1024, NP=3, ldb=3072 * 2, a_off=WS_H1, tiled=None, R=4, D=3, ntn=16, xa=8, xb=4),
        "wo": dict(Ktot=1024, NP=1, a_off=WS_O, tiled=0, R=5, D=3, ntn=16, xa=4, xb=8, gate=2048),
        "w1": dict(Ktot=1024, NP=4, a_off=WS_Y2, tiled=256, R=3, D=2, ntn=14, xa=4, xb=7),
        "w2": dict(Ktot=F_, NP=1, a_off=WS_H, tiled=1152, R=5, D=3, ntn=16, xa=4, xb=8, gate=5120),
    }[kind]
    cfg.update(o or {})
    Ktot, NP, R, ntn, D = cfg["Ktot"], cfg["NP"], cfg["R"], cfg["ntn"], cfg["D"]
    tiled = cfg["tiled"]
    stf = cfg.get("stf", STF)
    wide = NP > 1
    MB, NB = (2, NP) if wide else (1, 2)
    NS = Ktot // 64
    KB = Ktot // 16
    STAGE = 16384 + NP * 8192
    TAB = R * STAGE
    LDS = TAB + {"qkv": 0, "wo": 2048 + 1024 + 32768, "w1": 8192, "w2": 1024}[kind]
    COEF = TAB + 2048
    UVB = COEF + 1024
    assert LDS <= 163840, LDS
    LDS = max(LDS, 82 * 1024)
    nwg = 16 * ntn
    a_bytes = S_ * Ktot * 2
    k = K(name, nwg, 512, lds=LDS, vgpr=256, sgpr=96)
    end = exit_guard(k, nwg)
    k(f"s_load_dwordx2 s[6:7], s[0:1], {KA_WS}")
    if tiled is None:
        k(f"s_load_dwordx2 s[4:5], s[0:1], {KA_WQKV}")
    if kind == "w2":
        k(f"s_load_dwordx2 s[36:37], s[0:1], {KA_OUT}")
    if kind == "wo":
        k(f"s_load_dwordx2 s[36:37], s[0:1], {KA_X}")
    xa, xb = cfg["xa"], cfg["xb"]
    gm = 16 // xa
    k("v_lshrrev_b32 v1, 6, v0")
    k("v_and_b32 v0, 63, v0")
    k("s_and_b32 s20, s2, 7")
    k("s_lshr_b32 s21, s2, 3")
    k(f"s_and_b32 s22, s20, {gm-1}")
    k(f"s_lshr_b32 s23, s20, {gm.bit_length()-1}")
    k(f"s_and_b32 s24, s21, {xa-1}")
    k(f"s_lshr_b32 s25, s21, {xa.bit_length()-1}")
    k(f"s_mul_i32 s22, s22, {xa}")
    k("s_add_u32 s22, s22, s24")
    k(f"s_mul_i32 s23, s23, {xb}")
    k("s_add_u32 s23, s23, s25")
    MI, NJ, WV = 22, 23, 24
    k(f"v_readfirstlane_b32 s{WV}, v1")
    k("v_lshlrev_b32 v1, 4, v0")
    k("v_lshrrev_b32 v7, 5, v0")
    k("v_and_b32 v9, 31, v0")
    compute = k.newlabel("compute")
    k(f"s_cmp_lt_u32 s{WV}, 4")
    k(f"s_cbranch_scc1 {compute}")

    LW = 25
    k(f"s_sub_u32 s{LW}, s{WV}, 4")
    k(f"s_lshl_b32 s26, s{LW}, 12")
    k("v_add_u32 v2, s26, v1")
    SA_, SW_, SL, CNT = 28, 29, 30, 34
    k(f"s_mul_i32 s{SA_}, s{MI}, {KB*4096}")
    WV0 = 10
    if tiled is None:
        ldb = cfg["ldb"]
        k(f"s_mov_b32 s{SW_}, 0")
        k("v_lshrrev_b32 v4, 3, v0")
        k("v_and_b32 v3, 7, v0")
        k("v_bfe_u32 v5, v0, 4, 1")
        k("v_lshlrev_b32 v5, 2, v5")
        k("v_xor_b32 v3, v3, v5")
        k(f"s_lshl_b32 s26, s{LW}, 4")
        k("v_add_u32 v4, s26, v4")
        k(f"v_mul_u32_u24 v4, {ldb}, v4")
        k("v_lshl_add_u32 v4, v3, 4, v4")
        k(f"s_lshl_b32 s26, s{NJ}, 7")
        k("v_add_u32 v4, s26, v4")
        for p in range(NP):
            k(f"v_add_u32 v{WV0+2*p}, {p*2048}, v4")
            k(f"v_add_u32 v{WV0+2*p+1}, {p*2048 + 8*ldb - 1024}, v4")
        wreg = lambda p, j: WV0 + 2 * p + j
        wstep = 64 * ldb
    else:
        k(f"s_mul_i32 s{SW_}, s{NJ}, {NP*NS*8192}")
        k(f"s_lshl_b32 s26, s{LW}, 11")
        k("v_add_u32 v4, s26, v1")
        for p in range(NP):
            k(f"v_add_u32 v{WV0+p}, {p*NS*8192}, v4")
        wreg = lambda p, j: WV0 + p
        wstep = 8192
    k(f"s_lshl_b32 s31, s{LW}, 12")
    k(f"s_lshl_b32 s32, s{LW}, 11")
    k(f"s_add_u32 s32, s32, 16384")
    k(f"s_mov_b32 s{SL}, 0")
    k(f"s_mov_b32 s{CNT}, 0")
    k("s_waitcnt lgkmcnt(0)")
    tick(k, 0)
    k.srd_off(8, 6, cfg["a_off"], a_bytes)
    if tiled is None:
        k.srd(12, "s4", "s5", Ktot * cfg["ldb"])
    else:
        k.srd_off(12, 6, WS_WT + tiled * 8192, ntn * NP * NS * 8192)
    PCS = 4 + 2 * NP

    def issue_stage():
        k(f"s_add_u32 m0, s{SL}, s31")
        k(f"s_add_u32 s33, s{SL}, s32")
        for q in range(4):
            k(f"buffer_load_dwordx4 v2, s[8:11], s{SA_} offen offset:{1024*q} lds")
        for p in range(NP):
            k(f"s_add_u32 m0, s33, {p*8192}")
            k("s_nop 0")
            for j in range(2):
                k(f"buffer_load_dwordx4 v{wreg(p,j)}, s[12:15], s{SW_} offen offset:{1024*j}{cfg.get('wflag', '')} lds")
        k(f"s_add_u32 s{SA_}, s{SA_}, 16384")
        k(f"s_add_u32 s{SW_}, s{SW_}, {wstep}")
        k(f"s_add_u32 s{SL}, s{SL}, {STAGE}")
        k(f"s_cmp_eq_u32 s{SL}, {R*STAGE}")
        k(f"s_cselect_b32 s{SL}, 0, s{SL}")
        k(f"s_add_u32 s{CNT}, s{CNT}, 1")
    assert D <= R - 1 and PCS * D + 16 <= 63
    D0 = cfg.get("D0", min(2, D))
    pl = k.newlabel("lpro")
    k.label(pl)
    issue_stage()
    k(f"s_cmp_lt_u32 s{CNT}, {D0}")
    k(f"s_cbranch_scc1 {pl}")
    tick(k, 2)
    for d in range(D0, D):
        k(f"s_waitcnt vmcnt({PCS*(d-1)})")
        k("s_barrier")
        issue_stage()
        issue_stage()
    ml = k.newlabel("lmain")
    k.label(ml)
    k(f"s_waitcnt vmcnt({PCS*(D-1)})")
    k("s_barrier")
    issue_stage()
    k(f"s_cmp_lt_u32 s{CNT}, {NS}")
    k(f"s_cbranch_scc1 {ml}")
    tick(k, 3)
    extra = 0
    if kind == "w1":
        ST, UV = 32, 48
        k.srd(16, "s6", "s7", WS_SMALL)
        k(f"s_lshl_b32 s26, s{MI}, 7")
        k(f"s_lshl_b32 s27, s{LW}, 5")
        k("s_add_u32 s26, s26, s27")
        k("v_add_u32 v13, s26, v9")
        k("v_lshlrev_b32 v14, 3, v13")
        k("v_lshl_add_u32 v14, v7, 17, v14")
        for q in range(8):
            k(f"s_mov_b32 s27, {WS_ST2 + q*2048*8}")
            k(f"buffer_load_dwordx2 {v(ST+2*q,2)}, v14, s[16:19], s27 offen")
        k(f"s_lshl_b32 s26, s{NJ}, 10")
        k(f"s_lshl_b32 s27, s{LW}, 8")
        k("s_add_u32 s26, s26, s27")
        k("v_lshlrev_b32 v15, 2, v0")
        for vec in range(2):
            for part in range(4):
                k(f"s_add_u32 s27, s26, {WS_UVP + part*2*F_*4 + vec*F_*4}")
                k(f"buffer_load_dword v{UV+4*vec+part}, v15, s[16:19], s27 offen")
        extra = 16
    if kind == "wo":
        k.srd_off(16, 6, WS_WT + 256 * 8192, 896 * 8192)
        k("s_cmp_lt_u32 s2, 224")
        k("s_cselect_b32 s18, s18, 0")
        k("v_lshrrev_b32 v12, 1, v0")
        k("v_and_b32 v13, 1, v0")
        k(f"s_lshl_b32 s26, s{LW}, 1")
        k("v_add_u32 v13, s26, v13")
        k("v_bfe_u32 v14, v0, 2, 1")
        k("v_lshlrev_b32 v14, 2, v14")
        k("v_xor_b32 v13, v13, v14")
        k("v_lshlrev_b32 v13, 4, v13")
        k("v_lshl_add_u32 v12, v12, 7, v13")
        k("s_lshl_b32 s26, s2, 15")
        k(f"s_lshl_b32 s27, s{LW}, 13")
        k(f"s_add_u32 s27, s27, {UVB}")
        for q in range(8):
            k(f"s_add_u32 m0, s27, {1024*q}")
            k("s_nop 0")
            k(f"buffer_load_dwordx4 v12, s[16:19], s26 offen lds")
            k("s_add_u32 s26, s26, 4096")
        extra = 8
    for t in range(D - 1, 0, -1):
        k(f"s_waitcnt vmcnt({PCS*t+extra})")
        k("s_barrier")
    k(f"s_waitcnt vmcnt({extra if kind == 'wo' else 0})")
    if kind == "w1":
        k(f"v_add_f32 v16, v{ST}, v{ST+2}")
        k(f"v_add_f32 v18, v{ST+1}, v{ST+3}")
        for q in range(2, 8):
            k(f"v_add_f32 v16, v16, v{ST+2*q}")
            k(f"v_add_f32 v18, v18, v{ST+2*q+1}")
        half_reduce(k, 16, 17)
        k(f"v_mul_f32 v16, {hex(f2i(-1.0/1024))}, v16")
        k(f"s_mov_b32 s27, {hex(f2i(1.0/64))}")
        k("v_mov_b32 v19, 0")
        for q in range(8):
            k(f"v_fma_f32 v17, v{ST+2*q}, s27, v16")
            k("v_fmac_f32 v19, v17, v17")
        k(f"v_fmac_f32 v18, {hex(f2i(64.0))}, v19")
        half_reduce(k, 18, 17)
        k(f"v_mov_b32 v20, {hex(f2i(1e-5))}")
        k(f"v_fmac_f32 v20, {hex(f2i(1.0/1024))}, v18")
        k("v_sqrt_f32 v21, v20")
        for vec in range(2):
            b = UV + 4 * vec
            k(f"v_add_f32 v{b}, v{b}, v{b+1}")
            k(f"v_add_f32 v{b+2}, v{b+2}, v{b+3}")
            k(f"v_add_f32 v{b}, v{b}, v{b+2}")
        k("v_rcp_f32 v20, v21")
        split_hilo(k, 16, 22, 23)
        split_hilo(k, 21, 24, 25)
        split_hilo(k, UV, 26, 27)
        split_hilo(k, UV + 4, 28, 29)
        k("v_cmp_gt_u32 vcc, 32, v0")
        k("v_cvt_pk_bf16_f32 v60, v22, v22")
        k("v_cvt_pk_bf16_f32 v61, v23, v24")
        k("v_cvt_pk_bf16_f32 v62, v24, v25")
        k("v_mov_b32 v63, 0")
        for r in range(60, 63):
            k(f"v_cndmask_b32 v{r}, 0, v{r}, vcc")
        k("v_cvt_pk_bf16_f32 v64, v26, v27")
        k("v_cvt_pk_bf16_f32 v65, v26, v28")
        k("v_cvt_pk_bf16_f32 v66, v29, v28")
        k("v_mov_b32 v67, 0")
        k(f"s_lshl_b32 s26, s{LW}, 10")
        k(f"s_add_u32 s26, s26, {TAB}")
        k("v_add_u32 v14, s26, v1")
        k("ds_write_b128 v14, v[60:63]")
        k("ds_write_b128 v14, v[64:67] offset:4096")
        sk = k.newlabel("skrs")
        k(f"s_cmp_lg_u32 s{NJ}, 0")
        k(f"s_cbranch_scc1 {sk}")
        k("v_lshlrev_b32 v13, 2, v13")
        k(f"s_mov_b32 s27, {WS_RSTD}")
        k(f"buffer_store_dword v20, v13, s[16:19], s27 offen")
        k.label(sk)
        k("s_waitcnt lgkmcnt(0)")
    k("s_barrier")
    if kind == "wo":
        AF, BF, DD = 32, 64, 96
        nouv = k.newlabel("nouv")
        k("s_cmp_ge_u32 s2, 224")
        k(f"s_cbranch_scc1 {nouv}")
        k("v_lshrrev_b32 v12, 4, v0")
        k("v_and_b32 v13, 1, v0")
        k("v_lshlrev_b32 v13, 9, v13")
        k("v_lshl_add_u32 v13, v12, 4, v13")
        k(f"v_add_u32 v13, {COEF}, v13")
        k("v_lshlrev_b32 v14, 8, v12")
        k("v_and_b32 v15, 15, v0")
        k("v_lshl_add_u32 v14, v15, 3, v14")
        k("v_add_u32 v14, s27, v14")
        for r in range(4):
            k(f"v_mov_b32 v{DD+r}, 0")
        k("s_waitcnt vmcnt(0)")
        for half in range(2):
            for j in range(4 * half, 4 * half + 4):
                k(f"ds_read_b128 {v(AF+4*j,4)}, v13 offset:{64*j}")
                for t_ in range(2):
                    k(f"ds_read_b64_tr_b16 {v(BF+4*j+2*t_,2)}, v14 offset:{1024*j+128*t_}")
            k("s_waitcnt lgkmcnt(0)")
            for j in range(4 * half, 4 * half + 4):
                k(f"v_mfma_f32_16x16x32_bf16 {v(DD,4)}, {v(AF+4*j,4)}, {v(BF+4*j,4)}, {v(DD,4)}")
        k.srd(16, "s6", "s7", WS_SMALL)
        k("s_and_b32 s26, s2, 3")
        k(f"s_mul_i32 s26, s26, {2*F_*4}")
        k("s_lshr_b32 s27, s2, 2")
        k("s_lshl_b32 s27, s27, 8")
        k("s_add_u32 s26, s26, s27")
        k(f"s_lshl_b32 s27, s{LW}, 6")
        k("s_add_u32 s26, s26, s27")
        k(f"s_add_u32 s26, s26, {WS_UVP}")
        k(f"s_add_u32 s27, s26, {F_*4}")
        k("v_lshlrev_b32 v12, 2, v0")
        k("v_cmp_gt_u32 vcc, 16, v0")
        k("s_and_saveexec_b64 s[38:39], vcc")
        k(f"buffer_store_dword v{DD}, v12, s[16:19], s26 offen")
        k(f"buffer_store_dword v{DD+1}, v12, s[16:19], s27 offen")
        k.label(nouv)
    flush(k, 32, WV, 7, role=1)
    k("s_endpgm")

    k.label(compute)
    WM, WN = 25, 26
    if wide:
        k(f"s_lshr_b32 s{WM}, s{WV}, 1")
        k(f"s_and_b32 s{WN}, s{WV}, 1")
    else:
        k(f"s_mov_b32 s{WM}, s{WV}")
    NACC = MB * NB * 16
    ACC = 32
    FR = ACC + NACC
    FA = lambda b, i: FR + b * (MB + NB) * 4 + i * 4
    FW = lambda b, j: FR + b * (MB + NB) * 4 + (MB + j) * 4
    EX = FR + 2 * (MB + NB) * 4
    acc = lambda i, j: ACC + (i * NB + j) * 16
    VA0, VA = 2, 3
    VW0 = [4, 10]
    VW = [5, 11]
    k(f"s_lshl_b32 s27, s{WM}, {(MB*1024).bit_length()-1}")
    k(f"v_add_u32 v{VA0}, s27, v1")
    k("v_bfe_u32 v6, v0, 2, 2")
    k(f"v_lshlrev_b32 v{VW0[0]}, 7, v6")
    k(f"v_lshl_add_u32 v{VW0[0]}, v7, 9, v{VW0[0]}")
    k("v_bfe_u32 v8, v0, 4, 1")
    k(f"v_lshl_add_u32 v{VW0[0]}, v8, 5, v{VW0[0]}")
    k("v_and_b32 v8, 3, v0")
    k(f"v_lshl_add_u32 v{VW0[0]}, v8, 3, v{VW0[0]}")
    k(f"v_add_u32 v{VW0[0]}, 16384, v{VW0[0]}")
    k("v_lshrrev_b32 v8, 1, v6")
    if wide:
        k(f"v_xor_b32 v8, s{WN}, v8")
        k(f"v_lshl_add_u32 v{VW0[0]}, v8, 6, v{VW0[0]}")
    else:
        k("v_xor_b32 v6, 1, v8")
        k(f"v_lshl_add_u32 v{VW0[1]}, v6, 6, v{VW0[0]}")
        k(f"v_lshl_add_u32 v{VW0[0]}, v8, 6, v{VW0[0]}")
    nw = 1 if wide else 2
    ROW0 = 28
    k(f"s_lshl_b32 s{ROW0}, s{MI}, 7")
    k(f"s_lshl_b32 s29, s{WM}, {5 + (MB - 1)}")
    k(f"s_add_u32 s{ROW0}, s{ROW0}, s29")
    for r in range(NACC):
        k(f"v_mov_b32 v{ACC+r}, 0")
    k("s_waitcnt lgkmcnt(0)")
    tick(k, 0)
    k.srd(16, "s6", "s7", WS_SMALL)
    if not wide:
        G = EX
        XR = EX + 32
        XF = EX + 48
        CBV = EX + 80
        GP = EX + 112
        if kind == "wo":
            k.srd(40, "s36", "s37", ACT_BYTES)
        else:
            k.srd_off(40, 6, WS_X2, ACT_BYTES)
        XA = 44
        k(f"s_lshl_b32 s{XA}, s{MI}, 18")
        k(f"s_lshl_b32 s30, s{NJ}, 14")
        k(f"s_add_u32 s{XA}, s{XA}, s30")
        k(f"s_lshl_b32 s30, s{WM}, 10")
        k(f"s_add_u32 s{XA}, s{XA}, s30")
        for f in range(1, 4):
            k(f"s_add_u32 s{XA+f}, s{XA}, {4096*f}")
        k("v_lshlrev_b32 v12, 2, v0")
        k(f"v_add_u32 v14, s{ROW0}, v9")

    def late_loads():
        if wide:
            return
        vecs = [cfg["gate"]] + ([4096] if kind == "wo" else [])
        k(f"s_lshl_b32 s29, s{NJ}, 8")
        for vi, base in enumerate(vecs):
            for part in range(4):
                k(f"s_add_u32 s30, s29, {WS_MODP + base*4 + part*MPS}")
                k(f"buffer_load_dword v{GP+4*vi+part}, v12, s[16:19], s30 offen")
        if kind == "wo":
            k("s_and_b32 s29, s2, 3")
            k("s_lshl_b32 s29, s29, 10")
            k(f"s_lshl_b32 s30, s{WV}, 8")
            k("s_add_u32 s29, s29, s30")
            for vi, base in enumerate((4096, 3072)):
                for part in range(4):
                    k(f"s_add_u32 s30, s29, {WS_MODP + base*4 + part*MPS}")
                    k(f"buffer_load_dword v{GP+8+4*vi+part}, v12, s[16:19], s30 offen")
        if kind == "w2":
            k("v_lshlrev_b32 v15, 2, v14")
            k(f"s_mov_b32 s30, {WS_RSTD}")
            k(f"buffer_load_dword v{GP+8}, v15, s[16:19], s30 offen")
        if kind == "wo":
            k("v_lshlrev_b32 v15, 11, v14")
            k("v_lshl_add_u32 v15, v7, 4, v15")
            k(f"s_lshl_b32 s30, s{NJ}, 7")
            for f in range(4):
                k(f"buffer_load_dwordx4 {v(XR+4*f,4)}, v15, s[40:43], s30 offen offset:{32*f}")
        else:
            for f in range(4):
                k(f"buffer_load_dwordx4 {v(XR+4*f,4)}, v1, s[40:43], s{XA+f} offen")

    def mid_pieces():
        nv = 2 if kind == "wo" else 1
        def p_gate():
            k("s_waitcnt vmcnt(4)")
            k(f"s_lshl_b32 s29, s{WV}, {8 + nv - 1}")
            k(f"s_add_u32 s29, s29, {TAB}")
            k("v_add_u32 v12, s29, v12")
            k("v_lshl_add_u32 v13, v7, 4, s29")
            sum4_round(k, GP, 1, False)
            k(f"ds_write_b32 v12, v{GP}")
            if kind == "wo":
                sum4_round(k, GP + 4, 1, True)
                k(f"ds_write_b32 v12, v{GP+4} offset:256")
        def p_coef():
            sum4_round(k, GP + 8, 1, True)
            sum4_round(k, GP + 12, 1, False)
            k(f"s_lshl_b32 s29, s{WV}, 7")
            k(f"s_add_u32 s29, s29, {COEF}")
            k("v_lshl_add_u32 v15, v0, 1, s29")
            k(f"ds_write_b16_d16_hi v15, v{GP+8}")
            k(f"ds_write_b16_d16_hi v15, v{GP+12} offset:512")
        def p_g():
            for q in range(8):
                k(f"ds_read_b128 {v(G+4*q,4)}, v13 offset:{32*q}")
        def p_nop():
            pass
        def p_unpack():
            k("s_waitcnt vmcnt(0)")
            if kind == "wo":
                for f in range(4):
                    k(f"v_permlane32_swap_b32 v{XR+4*f}, v{XR+4*f+2}")
                    k(f"v_permlane32_swap_b32 v{XR+4*f+1}, v{XR+4*f+3}")
            for d in range(16):
                k(f"v_lshlrev_b32 v{XF+2*d}, 16, v{XR+d}")
                k(f"v_and_b32 v{XF+2*d+1}, 0xffff0000, v{XR+d}")
        def p_cb():
            for q in range(8):
                k(f"ds_read_b128 {v(CBV+4*q,4)}, v13 offset:{256+32*q}")
        def p_scale():
            for r in range(32):
                k(f"v_mul_f32 v{G+r}, v{G+r}, v{GP+8}")
        return [p_gate, p_coef, p_g, p_cb, p_unpack] if kind == "wo" else [p_gate, p_g, p_scale, p_unpack]

    def reads(buf, kb):
        ar = [f"ds_read_b128 {v(FA(buf,i),4)}, v{VA} offset:{kb*4096 + i*1024}" for i in range(MB)]
        wr = []
        for j in range(NB):
            ad, po = (VW[0], j * 8192) if wide else (VW[j], 0)
            for t in range(2):
                wr.append(f"ds_read_b64_tr_b16 {v(FW(buf,j)+2*t,2)}, v{ad} offset:{po + kb*2048 + t*1024}")
        return [ar[0], wr[0], wr[1]] + ar[1:] + wr[2:]

    def mfmas(buf):
        out = []
        for j in range(NB):
            for i in range(MB):
                A_, B_ = v(FW(buf, j), 4), v(FA(buf, i), 4)
                if kind == "qkv" and j == 2:
                    A_, B_ = B_, A_
                out.append(f"v_mfma_f32_32x32x16_bf16 {v(acc(i,j),16)}, {A_}, {B_}, {v(acc(i,j),16)}")
        return out

    def interleave(mf, rd, per):
        rd = list(rd)
        for m in mf:
            k(m)
            for _ in range(per):
                if rd:
                    k(rd.pop(0))
        for r in rd:
            k(r)

    SB, CNT = 34, 35
    k(f"s_mov_b32 s{SB}, 0")
    k(f"s_mov_b32 s{CNT}, 0")
    k(f"v_mov_b32 v{VA}, v{VA0}")
    for h in range(nw):
        k(f"v_mov_b32 v{VW[h]}, v{VW0[h]}")
    if cfg.get("cprio", 1):
        k("s_setprio 1")
    tick(k, 1)
    k("s_barrier")
    tick(k, 2)
    for r_ in reads(0, 0):
        k(r_)
    late_loads()
    loop, last = k.newlabel("loop"), k.newlabel("last")
    k.label(loop)
    per = 2 if wide else 3
    if not wide:
        mw, mwr = k.newlabel("mid"), k.newlabel("midret")
        M0_ = cfg.get("mid0", 9)
        k(f"s_sub_u32 s29, s{CNT}, {M0_}")
        k(f"s_cmp_lt_u32 s29, {len(mid_pieces())}")
        k(f"s_cbranch_scc1 {mw}")
        k.label(mwr)
    for st in range(3):
        k("s_waitcnt lgkmcnt(0)")
        interleave(mfmas(st % 2), reads((st + 1) % 2, st + 1), per)
        if st == 0:
            k(f"s_add_u32 s{SB}, s{SB}, {STAGE}")
            k(f"s_cmp_eq_u32 s{SB}, {R*STAGE}")
            k(f"s_cselect_b32 s{SB}, 0, s{SB}")
    k(f"s_add_u32 s{CNT}, s{CNT}, 1")
    k(f"v_add_u32 v{VA}, s{SB}, v{VA0}")
    for h in range(nw):
        k(f"v_add_u32 v{VW[h]}, s{SB}, v{VW0[h]}")
    k(f"s_cmp_eq_u32 s{CNT}, {NS}")
    k(f"s_cbranch_scc1 {last}")
    k("s_waitcnt lgkmcnt(0)")
    mf = mfmas(1)
    k(mf[0])
    k("s_barrier")
    rd = reads(0, 0)
    k(rd[0]); k(rd[1]); k(rd[2])
    interleave(mf[1:], rd[3:], per)
    k(f"s_branch {loop}")
    if not wide:
        k.label(mw)
        pcs = mid_pieces()
        labs = [k.newlabel("mp") for _ in pcs]
        for i in range(1, len(pcs)):
            k(f"s_cmp_eq_u32 s29, {i}")
            k(f"s_cbranch_scc1 {labs[i]}")
        for i, pc in enumerate(pcs):
            k.label(labs[i])
            pc()
            k(f"s_branch {mwr}")
    k.label(last)
    if kind == "w1":
        k(f"v_add_u32 v{VA}, {TAB}, v{VA0}")
        k(f"s_lshl_b32 s29, s{WN}, 9")
        k(f"s_add_u32 s29, s29, {TAB+4096}")
        k(f"v_lshl_add_u32 v{VW[0]}, v9, 4, s29")
        rd = [f"ds_read_b128 {v(FA(0,i),4)}, v{VA} offset:{i*1024}" for i in range(MB)]
        rd += [f"ds_read_b128 {v(FW(0,j),4)}, v{VW[0]} offset:{j*1024}" for j in range(NB)]
        k("s_waitcnt lgkmcnt(0)")
        interleave(mfmas(1), rd, per)
        k("s_waitcnt lgkmcnt(0)")
        for m in mfmas(0):
            k(m)
    else:
        k("s_waitcnt lgkmcnt(0)")
        for m in mfmas(1):
            k(m)
    tick(k, 3)

    T = EX if wide else FR
    def pack_block(base, dst):
        for d in range(8):
            k(f"v_cvt_pk_bf16_f32 v{dst+d}, v{base+2*d}, v{base+2*d+1}")
    if kind == "qkv":
        k.srd_off(40, 6, WS_Q, 3 * 0x400000)
        k(f"s_lshl_b32 s29, s{NJ}, 1")
        k(f"s_add_u32 s29, s29, s{WN}")
        k("s_lshl_b32 s29, s29, 17")
        k(f"s_lshl_b32 s30, s{ROW0}, 6")
        k("s_add_u32 s29, s29, s30")
        k(f"s_add_u32 s30, s29, {WS_K-WS_Q}")
        k(f"s_add_u32 s31, s29, {WS_V-WS_Q}")
        k(f"s_mov_b32 s32, {hex(f2i(LOG2E * 32 ** -0.5))}")
        k("s_mov_b32 s33, s32")
        k(f"s_mov_b32 s34, {hex(f2i(VSCALE))}")
        k("s_mov_b32 s35, s34")
        n = 0
        for j in (1, 0, 2):
            for i in range(MB):
                b = acc(i, j)
                if j != 1:
                    for r in range(0, 16, 2):
                        k(f"v_pk_mul_f32 {v(b+r,2)}, {v(b+r,2)}, s[{32+j}:{33+j}]")
                dst = T + 8 * (n % 4)
                n += 1
                pack_block(b, dst)
                for f in range(2):
                    k(f"buffer_store_dwordx4 {v(dst+4*f,4)}, v1, s[40:43], s{29+j} offen offset:{2048*i+1024*f}{stf}")
    elif kind == "w1":
        KBH = F_ // 16
        k.srd_off(40, 6, WS_H, H_BYTES)
        k(f"s_mul_i32 s29, s{MI}, {KBH*4096}")
        k(f"s_lshl_b32 s30, s{NJ}, 16")
        k("s_add_u32 s29, s29, s30")
        k(f"s_lshl_b32 s30, s{WN}, 13")
        k("s_add_u32 s29, s29, s30")
        k(f"s_lshl_b32 s30, s{WM}, 11")
        k("s_add_u32 s29, s29, s30")
        n = 0
        for j in range(NB):
            k(f"s_add_u32 s30, s29, {j*16384}")
            k(f"s_add_u32 s31, s29, {j*16384+4096}")
            for i in range(MB):
                dst = T + 8 * (n % 4)
                n += 1
                pack_block(acc(i, j), dst)
                for d in range(8):
                    k(f"v_pk_max_i16 v{dst+d}, v{dst+d}, 0")
                for f in range(2):
                    k(f"buffer_store_dwordx4 {v(dst+4*f,4)}, v1, s[40:43], s{30+f} offen offset:{1024*i}{stf}")
    else:
        PK = XR
        if kind == "wo":
            k.srd_off(40, 6, WS_X2, 2 * ACT_BYTES)
            for f in range(4):
                k(f"s_add_u32 s{48+f}, s{XA+f}, {WS_Y2-WS_X2}")
            k("s_nop 3")
        else:
            k.srd(40, "s36", "s37", ACT_BYTES)
            k("v_lshlrev_b32 v12, 11, v14")
            k("v_lshl_add_u32 v12, v7, 4, v12")
            k(f"s_lshl_b32 s31, s{NJ}, 7")
            k("s_nop 4")
        for f in range(4):
            for d in range(4 * f, 4 * f + 4):
                k(f"v_pk_fma_f32 {v(XF+2*d,2)}, {v(ACC+2*d,2)}, {v(G+2*d,2)}, {v(XF+2*d,2)}")
            for d in range(4 * f, 4 * f + 4):
                k(f"v_cvt_pk_bf16_f32 v{PK+d}, v{XF+2*d}, v{XF+2*d+1}")
            if kind == "wo":
                for d in range(4 * f, 4 * f + 4):
                    k(f"v_lshlrev_b32 v{XF+2*d}, 16, v{PK+d}")
                    k(f"v_and_b32 v{XF+2*d+1}, 0xffff0000, v{PK+d}")
                for d in range(4 * f, 4 * f + 4):
                    k(f"v_pk_mul_f32 {v(CBV+2*d,2)}, {v(CBV+2*d,2)}, {v(XF+2*d,2)}")
                for d in range(4 * f, 4 * f + 4):
                    k(f"v_cvt_pk_bf16_f32 v{FR+d}, v{CBV+2*d}, v{CBV+2*d+1}")
                k(f"buffer_store_dwordx4 {v(FR+4*f,4)}, v1, s[40:43], s{48+f} offen{stf}")
                k(f"buffer_store_dwordx4 {v(PK+4*f,4)}, v1, s[40:43], s{XA+f} offen{stf}")
            else:
                k("s_nop 1")
                k(f"v_permlane32_swap_b32 v{PK+4*f}, v{PK+4*f+2}")
                k(f"v_permlane32_swap_b32 v{PK+4*f+1}, v{PK+4*f+3}")
                k(f"buffer_store_dwordx4 {v(PK+4*f,4)}, v12, s[40:43], s31 offen offset:{32*f}{cfg.get('ostf', '')}")
        if kind == "wo":
            k(f"v_pk_add_f32 v[16:17], {v(XF,2)}, {v(XF+2,2)}")
            k(f"v_pk_add_f32 v[18:19], {v(XF+4,2)}, {v(XF+6,2)}")
            for d in range(4, 16, 2):
                k(f"v_pk_add_f32 v[16:17], v[16:17], {v(XF+2*d,2)}")
                k(f"v_pk_add_f32 v[18:19], v[18:19], {v(XF+2*d+2,2)}")
            k("v_pk_add_f32 v[16:17], v[16:17], v[18:19]")
            k("v_add_f32 v20, v16, v17")
            half_reduce(k, 20, 16)
            k(f"v_mul_f32 v22, {hex(f2i(-1.0/64))}, v20")
            k("v_mov_b32 v16, 0")
            k("v_mov_b32 v17, 0")
            k("v_mov_b32 v18, 0")
            k("v_mov_b32 v19, 0")
            for d in range(16):
                k(f"v_pk_add_f32 {v(XF+2*d,2)}, {v(XF+2*d,2)}, v[22:23] op_sel_hi:[1,0]")
            for d in range(16):
                ac = 16 + 2 * (d % 2)
                k(f"v_pk_fma_f32 {v(ac,2)}, {v(XF+2*d,2)}, {v(XF+2*d,2)}, {v(ac,2)}")
            k("v_pk_add_f32 v[16:17], v[16:17], v[18:19]")
            k("v_add_f32 v21, v16, v17")
            half_reduce(k, 21, 16)
            k("v_lshlrev_b32 v12, 3, v14")
            k(f"s_lshl_b32 s35, s{NJ}, 14")
            k(f"s_add_u32 s35, s35, {WS_ST2}")
            k("v_cmp_gt_u32 vcc, 32, v0")
            k("s_and_saveexec_b64 s[38:39], vcc")
            k(f"buffer_store_dwordx2 v[20:21], v12, s[16:19], s35 offen{stf}")
    tick(k, 4)
    flush(k, 16, WV, 0)
    k.label(end)
    k("s_endpgm")
    return k


def gen_w2s(name, o=None):
    cfg = dict(R=4, D=3, D0=2, NA=24, xa=4, xb=4, poll=4)
    cfg.update(o or {})
    R, D, D0, NA = cfg["R"], cfg["D"], cfg["D0"], cfg["NA"]
    NST = F_ // 64
    NBS = NST - NA
    KB = F_ // 16
    NP, MB, NB = 2, 2, 2
    STAGE = 32768
    TAB = R * STAGE
    k = K(name, 256, 512, lds=TAB + 1024, vgpr=256, sgpr=96)
    end = exit_guard(k, 256)
    k(f"s_load_dwordx2 s[6:7], s[0:1], {KA_WS}")
    k(f"s_load_dwordx2 s[36:37], s[0:1], {KA_OUT}")
    xa, xb = cfg["xa"], cfg["xb"]
    gm = 16 // xa
    k("v_lshrrev_b32 v1, 6, v0")
    k("v_and_b32 v0, 63, v0")
    if cfg.get("xrole"):
        xa, xb = cfg.get("xa2", 8), cfg.get("xb2", 4)
        gm = 16 // xa
        k("s_and_b32 s20, s2, 3")
        k("s_lshr_b32 s21, s2, 3")
        k("s_bfe_u32 s22, s2, 0x10002")
        k("s_lshl_b32 s22, s22, 7")
        k("s_lshl_b32 s23, s21, 2")
        k("s_add_u32 s22, s22, s23")
        k("s_add_u32 s2, s22, s20")
    else:
        k("s_and_b32 s20, s2, 7")
        k("s_bfe_u32 s21, s2, 0x40003")
    k(f"s_and_b32 s22, s20, {gm-1}")
    k(f"s_lshr_b32 s23, s20, {gm.bit_length()-1}")
    k(f"s_and_b32 s24, s21, {xa-1}")
    k(f"s_lshr_b32 s25, s21, {xa.bit_length()-1}")
    k(f"s_mul_i32 s22, s22, {xa}")
    k("s_add_u32 s22, s22, s24")
    k(f"s_mul_i32 s23, s23, {xb}")
    k("s_add_u32 s23, s23, s25")
    MI, NJ, WV, NS, K0 = 22, 23, 24, 20, 21
    k(f"v_readfirstlane_b32 s{WV}, v1")
    k("s_cmp_ge_u32 s2, 128")
    k(f"s_cselect_b32 s{NS}, {NBS}, {NA}")
    k(f"s_cselect_b32 s{K0}, {NA}, 0")
    k("v_lshlrev_b32 v1, 4, v0")
    k("v_lshrrev_b32 v7, 5, v0")
    k("v_and_b32 v9, 31, v0")
    compute = k.newlabel("compute")
    k(f"s_cmp_lt_u32 s{WV}, 4")
    k(f"s_cbranch_scc1 {compute}")
    LW = 25
    k(f"s_sub_u32 s{LW}, s{WV}, 4")
    k(f"s_lshl_b32 s26, s{LW}, 12")
    k("v_add_u32 v2, s26, v1")
    SA_, SW_, SL, CNT = 28, 29, 30, 34
    k(f"s_mul_i32 s{SA_}, s{MI}, {KB*4096}")
    k(f"s_lshl_b32 s26, s{K0}, 14")
    k(f"s_add_u32 s{SA_}, s{SA_}, s26")
    k(f"s_mul_i32 s{SW_}, s{NJ}, {NP*NST*8192}")
    k(f"s_lshl_b32 s26, s{K0}, 13")
    k(f"s_add_u32 s{SW_}, s{SW_}, s26")
    k(f"s_lshl_b32 s26, s{LW}, 11")
    k("v_add_u32 v10, s26, v1")
    k(f"v_add_u32 v11, {NST*8192}, v10")
    k(f"s_lshl_b32 s31, s{LW}, 12")
    k(f"s_lshl_b32 s32, s{LW}, 11")
    k(f"s_add_u32 s32, s32, 16384")
    k(f"s_mov_b32 s{SL}, 0")
    k(f"s_mov_b32 s{CNT}, 0")
    k("s_waitcnt lgkmcnt(0)")
    tick(k, 0)
    k.srd_off(8, 6, WS_H, H_BYTES)
    k.srd_off(12, 6, WS_WT + 1152 * 8192, 896 * 8192)
    PCS = 8

    def issue_stage():
        k(f"s_add_u32 m0, s{SL}, s31")
        k(f"s_add_u32 s33, s{SL}, s32")
        for q in range(4):
            k(f"buffer_load_dwordx4 v2, s[8:11], s{SA_} offen offset:{1024*q} lds")
        for p in range(NP):
            k(f"s_add_u32 m0, s33, {p*8192}")
            k("s_nop 0")
            for j in range(2):
                k(f"buffer_load_dwordx4 v{10+p}, s[12:15], s{SW_} offen offset:{1024*j} lds")
        k(f"s_add_u32 s{SA_}, s{SA_}, 16384")
        k(f"s_add_u32 s{SW_}, s{SW_}, 8192")
        k(f"s_add_u32 s{SL}, s{SL}, {STAGE}")
        k(f"s_cmp_eq_u32 s{SL}, {R*STAGE}")
        k(f"s_cselect_b32 s{SL}, 0, s{SL}")
        k(f"s_add_u32 s{CNT}, s{CNT}, 1")
    assert D <= R - 1
    pl = k.newlabel("lpro")
    k.label(pl)
    issue_stage()
    k(f"s_cmp_lt_u32 s{CNT}, {D0}")
    k(f"s_cbranch_scc1 {pl}")
    for d in range(D0, D):
        k(f"s_waitcnt vmcnt({PCS*(d-1)})")
        k("s_barrier")
        issue_stage()
        issue_stage()
    ml = k.newlabel("lmain")
    k.label(ml)
    k(f"s_waitcnt vmcnt({PCS*(D-1)})")
    k("s_barrier")
    issue_stage()
    k(f"s_cmp_lt_u32 s{CNT}, s{NS}")
    k(f"s_cbranch_scc1 {ml}")
    for t in range(D - 1, -1, -1):
        k(f"s_waitcnt vmcnt({PCS*t})")
        k("s_barrier")
    k("s_endpgm")

    k.label(compute)
    WM, WN = 25, 26
    k(f"s_lshr_b32 s{WM}, s{WV}, 1")
    k(f"s_and_b32 s{WN}, s{WV}, 1")
    ACC, FR, G, XR, PT = 32, 96, 128, 160, 192
    FA = lambda b, i: FR + b * 16 + i * 4
    FW = lambda b, j: FR + b * 16 + 8 + j * 4
    acc = lambda i, j: ACC + (i * NB + j) * 16
    VA0, VA, VW0, VW = 2, 3, [4, 10], [5, 11]
    GP, RS, FL = 16, 20, 22
    k(f"s_lshl_b32 s27, s{WM}, 11")
    k(f"v_add_u32 v{VA0}, s27, v1")
    k("v_bfe_u32 v6, v0, 2, 2")
    k(f"v_lshlrev_b32 v{VW0[0]}, 7, v6")
    k(f"v_lshl_add_u32 v{VW0[0]}, v7, 9, v{VW0[0]}")
    k("v_bfe_u32 v8, v0, 4, 1")
    k(f"v_lshl_add_u32 v{VW0[0]}, v8, 5, v{VW0[0]}")
    k("v_and_b32 v8, 3, v0")
    k(f"v_lshl_add_u32 v{VW0[0]}, v8, 3, v{VW0[0]}")
    k(f"s_lshl_b32 s27, s{WN}, 13")
    k("s_add_u32 s27, s27, 16384")
    k(f"v_add_u32 v{VW0[0]}, s27, v{VW0[0]}")
    k("v_lshrrev_b32 v8, 1, v6")
    k("v_xor_b32 v6, 1, v8")
    k(f"v_lshl_add_u32 v{VW0[1]}, v6, 6, v{VW0[0]}")
    k(f"v_lshl_add_u32 v{VW0[0]}, v8, 6, v{VW0[0]}")
    ROW0, PAN, PB, FO, DONE, PS = 28, 33, 48, 49, 50, 51
    k(f"s_lshl_b32 s{ROW0}, s{MI}, 7")
    k(f"s_lshl_b32 s29, s{WM}, 6")
    k(f"s_add_u32 s{ROW0}, s{ROW0}, s29")
    k(f"s_lshl_b32 s{PAN}, s{NJ}, 1")
    k(f"s_add_u32 s{PAN}, s{PAN}, s{WN}")
    k("s_and_b32 s29, s2, 127")
    k("s_lshl_b32 s29, s29, 2")
    k(f"s_add_u32 s29, s29, s{WV}")
    k(f"s_lshl_b32 s{PB}, s29, 14")
    k(f"s_lshl_b32 s{FO}, s29, 6")
    k(f"s_add_u32 s{FO}, s{FO}, {WS_FLAG}")
    for r in range(64):
        k(f"v_mov_b32 v{ACC+r}, 0")
    k("v_lshlrev_b32 v12, 2, v0")
    k(f"v_add_u32 v14, s{ROW0}, v9")
    k("v_mov_b32 v15, 0")
    k(f"s_mov_b32 s{DONE}, 0")
    k("s_cmp_ge_u32 s2, 128")
    k(f"s_cselect_b32 s{PS}, {NBS - cfg['poll'] - 2}, 999")
    k("s_waitcnt lgkmcnt(0)")
    tick(k, 0)
    k.srd(16, "s6", "s7", WS_SMALL)
    k.srd_off(40, 6, WS_X2, ACT_BYTES)
    k.srd_off(52, 6, WS_PART, 8 << 20)

    def reads(buf, kb):
        ar = [f"ds_read_b128 {v(FA(buf,i),4)}, v{VA} offset:{kb*4096 + i*1024}" for i in range(MB)]
        wr = []
        for j in range(NB):
            for t in range(2):
                wr.append(f"ds_read_b64_tr_b16 {v(FW(buf,j)+2*t,2)}, v{VW[j]} offset:{kb*2048 + t*1024}")
        return [ar[0], wr[0], wr[1]] + ar[1:] + wr[2:]

    def mfmas(buf):
        return [f"v_mfma_f32_32x32x16_bf16 {v(acc(i,j),16)}, {v(FW(buf,j),4)}, {v(FA(buf,i),4)}, {v(acc(i,j),16)}"
                for j in range(NB) for i in range(MB)]

    def interleave(mf, rd, per=2):
        rd = list(rd)
        for m in mf:
            k(m)
            for _ in range(per):
                if rd:
                    k(rd.pop(0))
        for r in rd:
            k(r)

    def flag_load():
        k(f"buffer_load_dword v{FL}, v15, s[16:19], s{FO} offen sc0 sc1")

    def part_loads():
        for q in range(16):
            if q % 4 == 0:
                k(f"s_add_u32 s29, s{PB}, {1024*q}")
            k(f"buffer_load_dwordx4 {v(PT+4*q,4)}, v1, s[52:55], s29 offen offset:{1024*(q%4)} sc0 sc1")

    SB, CNT = 34, 35
    k(f"s_mov_b32 s{SB}, 0")
    k(f"s_mov_b32 s{CNT}, 0")
    k(f"v_mov_b32 v{VA}, v{VA0}")
    for h in range(2):
        k(f"v_mov_b32 v{VW[h]}, v{VW0[h]}")
    k("s_setprio 1")
    tick(k, 1)
    k("s_barrier")
    tick(k, 2)
    for r_ in reads(0, 0):
        k(r_)
    loop, last, mw, mwr = k.newlabel("loop"), k.newlabel("last"), k.newlabel("mid"), k.newlabel("midret")
    k("s_cmp_lt_u32 s2, 128")
    k(f"s_cbranch_scc1 {loop}")
    k(f"s_lshl_b32 s29, s{PAN}, 8")
    for part in range(4):
        k(f"s_add_u32 s30, s29, {WS_MODP + 5120*4 + part*MPS}")
        k(f"buffer_load_dword v{GP+part}, v12, s[16:19], s30 offen")
    k("v_lshlrev_b32 v13, 2, v14")
    k(f"s_mov_b32 s30, {WS_RSTD}")
    for i in range(2):
        k(f"buffer_load_dword v{RS+i}, v13, s[16:19], s30 offen offset:{128*i}")
    k(f"s_lshl_b32 s29, s{MI}, 18")
    k(f"s_lshl_b32 s30, s{PAN}, 14")
    k("s_add_u32 s29, s29, s30")
    k(f"s_lshl_b32 s30, s{WM}, 11")
    k("s_add_u32 s29, s29, s30")
    for f in range(4):
        for i in range(2):
            k(f"buffer_load_dwordx4 {v(XR+16*i+4*f,4)}, v1, s[40:43], s29 offen offset:{1024*i}")
        k("s_add_u32 s29, s29, 4096")
    k.label(loop)
    k(f"s_cmp_ge_u32 s{CNT}, s{PS}")
    k(f"s_cbranch_scc1 {mw}")
    k.label(mwr)
    for st in range(3):
        k("s_waitcnt lgkmcnt(0)")
        interleave(mfmas(st % 2), reads((st + 1) % 2, st + 1))
        if st == 0:
            k(f"s_add_u32 s{SB}, s{SB}, {STAGE}")
            k(f"s_cmp_eq_u32 s{SB}, {R*STAGE}")
            k(f"s_cselect_b32 s{SB}, 0, s{SB}")
    k(f"s_add_u32 s{CNT}, s{CNT}, 1")
    k(f"v_add_u32 v{VA}, s{SB}, v{VA0}")
    for h in range(2):
        k(f"v_add_u32 v{VW[h]}, s{SB}, v{VW0[h]}")
    k(f"s_cmp_eq_u32 s{CNT}, s{NS}")
    k(f"s_cbranch_scc1 {last}")
    k("s_waitcnt lgkmcnt(0)")
    mf = mfmas(1)
    k(mf[0])
    k("s_barrier")
    rd = reads(0, 0)
    k(rd[0]); k(rd[1]); k(rd[2])
    interleave(mf[1:], rd[3:])
    k(f"s_branch {loop}")
    k.label(mw)
    m1, m2 = k.newlabel("m1"), k.newlabel("m2")
    k(f"s_sub_u32 s29, s{CNT}, s{PS}")
    k("s_cmp_eq_u32 s29, 1")
    k(f"s_cbranch_scc1 {m1}")
    k("s_cmp_gt_u32 s29, 1")
    k(f"s_cbranch_scc1 {m2}")
    k("s_waitcnt vmcnt(0)")
    k(f"s_lshl_b32 s29, s{WV}, 8")
    k(f"s_add_u32 s29, s29, {TAB}")
    k("v_add_u32 v12, s29, v12")
    k("v_lshl_add_u32 v13, v7, 4, s29")
    sum4_round(k, GP, 1, False)
    k(f"ds_write_b32 v12, v{GP}")
    k(f"s_branch {mwr}")
    k.label(m1)
    flag_load()
    for q in range(8):
        k(f"ds_read_b128 {v(G+4*q,4)}, v13 offset:{32*q}")
    k(f"s_branch {mwr}")
    k.label(m2)
    k(f"s_cmp_lg_u32 s{DONE}, 0")
    k(f"s_cbranch_scc1 {mwr}")
    k("s_waitcnt vmcnt(0)")
    k(f"v_readfirstlane_b32 s{DONE}, v{FL}")
    m3 = k.newlabel("m3")
    k("s_nop 3")
    k(f"s_cmp_lg_u32 s{DONE}, 0")
    k(f"s_cbranch_scc1 {m3}")
    flag_load()
    k(f"s_branch {mwr}")
    k.label(m3)
    part_loads()
    k(f"s_branch {mwr}")

    k.label(last)
    k("s_waitcnt lgkmcnt(0)")
    for m in mfmas(1):
        k(m)
    tick(k, 3)
    roleb = k.newlabel("roleb")
    k("s_cmp_ge_u32 s2, 128")
    k(f"s_cbranch_scc1 {roleb}")
    k("v_mov_b32 v16, 1")
    k("s_nop 7")
    order = [acc(0, 0), acc(1, 0), acc(0, 1), acc(1, 1)]
    for b in order:
        q0 = (b - ACC) // 4
        k(f"s_add_u32 s29, s{PB}, {1024*q0}")
        for q in range(4):
            k(f"buffer_store_dwordx4 {v(b+4*q,4)}, v1, s[52:55], s29 offen offset:{1024*q} sc0 sc1")
    k("s_waitcnt vmcnt(0)")
    k("v_cmp_eq_u32 vcc, 0, v0")
    k("s_and_saveexec_b64 s[38:39], vcc")
    k(f"buffer_store_dword v16, v15, s[16:19], s{FO} offen sc0 sc1")
    tick(k, 4)
    flush(k, 16, WV, 0)
    k("s_endpgm")
    k.label(roleb)
    got, spin = k.newlabel("got"), k.newlabel("spin")
    k(f"s_cmp_lg_u32 s{DONE}, 0")
    k(f"s_cbranch_scc1 {got}")
    k.label(spin)
    k("s_waitcnt vmcnt(0)")
    k(f"v_readfirstlane_b32 s{DONE}, v{FL}")
    sp2 = k.newlabel("sp2")
    k("s_nop 3")
    k(f"s_cmp_lg_u32 s{DONE}, 0")
    k(f"s_cbranch_scc1 {sp2}")
    k("s_sleep 2")
    flag_load()
    k(f"s_branch {spin}")
    k.label(sp2)
    part_loads()
    k.label(got)
    tick(k, 5)
    k.srd(40, "s36", "s37", ACT_BYTES)
    k("v_lshlrev_b32 v12, 11, v14")
    k("v_lshl_add_u32 v12, v7, 4, v12")
    k(f"s_lshl_b32 s30, s{PAN}, 7")
    k(f"s_add_u32 s31, s30, {32*2048}")
    k("s_nop 4")
    nst = 0
    for i in range(2):
        for f in range(4):
            b = ACC + 32 * i + 8 * f
            pt = PT + 32 * i + 8 * f
            T = FR + 8 * (nst % 2)
            O_ = FR + 16 + 4 * (nst % 4)
            k(f"s_waitcnt vmcnt({14 - 2*nst})")
            for d in range(4):
                k(f"v_pk_add_f32 {v(b+2*d,2)}, {v(b+2*d,2)}, {v(pt+2*d,2)}")
            for d in range(4):
                k(f"v_lshlrev_b32 v{T+2*d}, 16, v{XR+16*i+4*f+d}")
                k(f"v_and_b32 v{T+2*d+1}, 0xffff0000, v{XR+16*i+4*f+d}")
            sel = "op_sel_hi:[1,0]" if i == 0 else "op_sel:[0,1]"
            for d in range(4):
                k(f"v_pk_mul_f32 {v(b+2*d,2)}, {v(b+2*d,2)}, {v(RS,2)} {sel}")
            for d in range(4):
                k(f"v_pk_fma_f32 {v(T+2*d,2)}, {v(b+2*d,2)}, {v(G+8*f+2*d,2)}, {v(T+2*d,2)}")
            for d in range(4):
                k(f"v_cvt_pk_bf16_f32 v{XR+16*i+4*f+d}, v{T+2*d}, v{T+2*d+1}")
            nst += 1
    k("s_nop 1")
    for i in range(2):
        for f in range(4):
            o_ = XR + 16 * i + 4 * f
            k(f"v_permlane32_swap_b32 v{o_}, v{o_+2}")
            k(f"v_permlane32_swap_b32 v{o_+1}, v{o_+3}")
            k(f"buffer_store_dwordx4 {v(o_,4)}, v12, s[40:43], s{30+i} offen offset:{32*f}")
    tick(k, 4)
    flush(k, 16, WV, 0)
    k.label(end)
    k("s_endpgm")
    return k


def gen_attn(name, o=None):
    o = dict(o or {})
    R, NSTG, STG = 4, 16, 16384
    GEM = R * STG
    out_off = o.get("out", WS_O)
    k = K(name, 256, 768, lds=GEM + 32768, vgpr=168, sgpr=64)
    end = exit_guard(k, 256)
    k(f"s_load_dwordx2 s[6:7], s[0:1], {KA_WS}")
    HD, QB, WV = 20, 21, 22
    k("v_lshrrev_b32 v1, 6, v0")
    k("v_and_b32 v0, 63, v0")
    k("s_and_b32 s20, s2, 7")
    k("s_lshl_b32 s20, s20, 2")
    k("s_bfe_u32 s21, s2, 0x20003")
    k("s_add_u32 s20, s20, s21")
    k(f"v_readfirstlane_b32 s{WV}, v1")
    k("s_lshr_b32 s21, s2, 5")
    k("s_lshl_b32 s21, s21, 3")
    VL = 2
    k(f"v_lshlrev_b32 v{VL}, 4, v0")
    k(f"s_lshl_b32 s23, s{HD}, 17")
    helper = k.newlabel("helper")
    k(f"s_cmp_ge_u32 s{WV}, 8")
    k(f"s_cbranch_scc1 {helper}")
    k(f"s_add_u32 s{QB}, s21, s{WV}")
    Sr = lambda b: 16 + 16 * b
    Pr = lambda b: 48 + 8 * b
    Or = lambda b: 64 + 16 * b
    Lr = lambda b: 96 + 4 * b
    CI, Q, KR, VR, ONE, M, T0 = 104, 120, 128, 136, 144, 148, 150
    VK, VV = 3, 4
    OFFS, THR = float(o.get("offs", 96)), 2.0 ** o.get("thr", 8)
    KVSZ = 3 * 0x400000
    def emit(lst):
        for x in lst:
            k(x)
    k(f"s_lshl_b32 s28, s{WV}, 10")
    k("s_add_u32 s24, s23, s28")
    k(f"s_add_u32 s25, s24, {WS_V-WS_Q}")
    k(f"s_add_u32 s24, s24, {WS_K-WS_Q}")
    k(f"s_lshl_b32 s31, s{QB}, 11")
    k("s_add_u32 s30, s23, s31")
    k("s_mov_b32 m0, s28")
    k("s_add_u32 s29, s28, 8192")
    k("s_waitcnt lgkmcnt(0)")
    tick(k, 0)
    k.srd_off(8, 6, WS_Q, KVSZ)
    k(f"buffer_load_dwordx4 v{VL}, s[8:11], s24 offen lds")
    k(f"buffer_load_dwordx4 {v(Q,4)}, v{VL}, s[8:11], s30 offen")
    k("s_mov_b32 m0, s29")
    k(f"buffer_load_dwordx4 {v(Q+4,4)}, v{VL}, s[8:11], s30 offen offset:1024")
    k(f"buffer_load_dwordx4 v{VL}, s[8:11], s25 offen lds")
    k.srd_off(12, 6, out_off, ACT_BYTES)
    k("v_bfe_u32 v5, v0, 2, 1")
    k("v_bfe_u32 v6, v0, 4, 1")
    k("v_cmp_eq_u32 vcc, v5, v6")
    k("v_mov_b32 v5, 0x3f803f80")
    k("s_nop 0")
    k(f"v_cndmask_b32 v{ONE}, 0, v5, vcc")
    for i in range(1, 4):
        k(f"v_mov_b32 v{ONE+i}, v{ONE}")
    for r in range(16):
        k(f"v_mov_b32 v{Or(0)+r}, 0")
    for r in range(4):
        k(f"v_mov_b32 v{Lr(0)+r}, 0")
    THS, SGB, IT = 32, 33, 34
    k(f"s_mov_b32 s{THS}, {hex(f2i(THR))}")
    k(f"s_mov_b32 s{SGB}, 0")
    k(f"s_mov_b32 s{IT}, 0")
    k(f"v_mov_b32 v{VK}, v{VL}")
    k(f"v_mov_b32 v{VV}, v{VL}")
    k(f"s_lshr_b32 s30, s{QB}, 2")
    k("s_lshl_b32 s30, s30, 18")
    k(f"s_lshl_b32 s31, s{HD}, 13")
    k("s_add_u32 s30, s30, s31")
    k(f"s_and_b32 s31, s{QB}, 3")
    k("s_lshl_b32 s31, s31, 10")
    k("s_add_u32 s30, s30, s31")
    k("s_add_u32 s31, s30, 4096")
    tick(k, 1)
    k("s_waitcnt vmcnt(0)")
    tick(k, 2)
    k("s_barrier")
    tick(k, 3)

    def kread(addr, tl, dst=KR):
        return [f"ds_read_b128 {v(dst+4*f,4)}, v{addr} offset:{tl*2048+f*1024}" for f in range(2)]
    def vread(addr, tl):
        return [f"ds_read_b128 {v(VR+4*f,4)}, v{addr} offset:{8192+tl*2048+f*1024}" for f in range(2)]
    def qk(sb, c0, kr=KR):
        return [f"v_mfma_f32_32x32x16_bf16 {v(sb,16)}, {v(kr,4)}, {v(Q,4)}, {c0}",
                f"v_mfma_f32_32x32x16_bf16 {v(sb,16)}, {v(kr+4,4)}, {v(Q+4,4)}, {v(sb,16)}"]
    def pv(pb, od, oc):
        return [f"v_mfma_f32_32x32x16_bf16 {v(od,16)}, {v(VR,4)}, {v(pb,4)}, {v(oc,16)}",
                f"v_mfma_f32_32x32x16_bf16 {v(od,16)}, {v(VR+4,4)}, {v(pb+4,4)}, {v(od,16)}"]
    def sm(pb, ld, lc):
        return [f"v_mfma_f32_16x16x32_bf16 {v(ld,4)}, {v(ONE,4)}, {v(pb,4)}, {v(lc,4)}",
                f"v_mfma_f32_16x16x32_bf16 {v(ld,4)}, {v(ONE,4)}, {v(pb+4,4)}, {v(ld,4)}"]
    def tilemax(sb, dst):
        k(f"v_max3_f32 v{dst}, v{sb}, v{sb+1}, v{sb+2}")
        k(f"v_max3_f32 v{dst+1}, v{sb+3}, v{sb+4}, v{sb+5}")
        for r in range(6, 14, 4):
            k(f"v_max3_f32 v{dst}, v{dst}, v{sb+r}, v{sb+r+1}")
            k(f"v_max3_f32 v{dst+1}, v{dst+1}, v{sb+r+2}, v{sb+r+3}")
        k(f"v_max3_f32 v{dst}, v{dst}, v{sb+14}, v{sb+15}")
        k(f"v_max_f32 v{dst}, v{dst}, v{dst+1}")
        half_reduce(k, dst, dst + 1, "v_max_f32")
    def expcvt(sb, pb):
        for r in range(16):
            k(f"v_exp_f32 v{sb+r}, v{sb+r}")
        k("s_nop 0")
        for d in range(8):
            k(f"v_cvt_pk_bf16_f32 v{pb+d}, v{sb+2*d}, v{sb+2*d+1}")
    def set_ci():
        k(f"v_sub_f32 v{CI}, 0, v{M}")
        for r in range(1, 16):
            k(f"v_mov_b32 v{CI+r}, v{CI}")

    entry = [k.newlabel("it1"), k.newlabel("it5")]
    slow = [k.newlabel("slow0"), k.newlabel("slow1")]
    emit(kread(VK, 0))
    emit(kread(VK, 1, VR))
    k("s_waitcnt lgkmcnt(2)")
    emit(qk(Sr(0), "0"))
    emit(kread(VK, 2))
    k("s_nop 9")
    tilemax(Sr(0), T0)
    k(f"v_add_f32 v{M}, {hex(f2i(OFFS))}, v{T0}")
    set_ci()
    k("s_nop 0")
    k("s_waitcnt lgkmcnt(2)")
    emit(qk(Sr(1), v(CI, 16), VR))
    emit(vread(VV, 0))
    for r in range(16):
        k(f"v_sub_f32 v{Sr(0)+r}, v{Sr(0)+r}, v{M}")
    expcvt(Sr(0), Pr(0))
    k(f"s_branch {entry[0]}")

    def restart():
        set_ci()
        k(f"v_add_u32 v{VK}, s{SGB}, v{VL}")
        k(f"v_add_u32 v{VV}, s{SGB}, v{VL}")
        emit(kread(VK, 0))
        k("s_waitcnt lgkmcnt(0)")
        emit(qk(Sr(0), v(CI, 16)))
        emit(kread(VK, 1))
        k("s_waitcnt lgkmcnt(0)")
        emit(qk(Sr(1), v(CI, 16)))
        emit(kread(VK, 2))
        emit(vread(VV, 0))
        k("s_nop 7")
        expcvt(Sr(0), Pr(0))

    loop = k.newlabel("loop")
    tail = k.newlabel("tail")
    k.label(loop)
    sched = o.get("sched", "W q0 e e e e q1 K e c e c W p0 e e c e s0 e c e p1 V e c e e c s1 e e c c").split()
    assert sched.count("e") == 16 and sched.count("c") == 8
    prio = o.get("prio", (3, 2, 1, 0))
    for it in range(1, 9):
        t = it
        g_prev = ((t - 1) // 4) % 2
        first_of_group = ((t - 1) % 4 == 0)
        od = Or(1 - g_prev)
        oc = Or(g_prev) if first_of_group else od
        ld_ = Lr(1 - g_prev)
        lc = Lr(g_prev) if first_of_group else ld_
        if first_of_group:
            after_s1 = len(sched) - 1 - sched.index("s1")
            k(f"s_add_u32 s{SGB}, s{SGB}, {STG}")
            k(f"s_and_b32 s{SGB}, s{SGB}, {R*STG-1}")
            if after_s1 + 2 < 8:
                k(f"s_nop {8 - after_s1 - 2 - 1}")
            k(f"v_cmp_nge_f32 vcc, s{THS}, v{Lr(g_prev)}")
            k(f"s_cbranch_vccnz {slow[1-g_prev]}")
            k.label(entry[g_prev])
        if it == 8:
            k(f"s_cmp_eq_u32 s{IT}, 7")
            k(f"s_cbranch_scc1 {tail}")
        sb, pb = Sr(t % 2), Pr(t % 2)
        snext = Sr((t + 1) % 2)
        pprev = Pr((t - 1) % 2)
        mf = {}
        mf["q0"], mf["q1"] = qk(snext, v(CI, 16))
        mf["p0"], mf["p1"] = pv(pprev, od, oc)
        mf["s0"], mf["s1"] = sm(pprev, ld_, lc)
        ex = [f"v_exp_f32 v{sb+r}, v{sb+r}" for r in range(16)]
        cv = [f"v_cvt_pk_bf16_f32 v{pb+d}, v{sb+2*d}, v{sb+2*d+1}" for d in range(8)]
        ph = (t + 2) % 4
        ne = nc = 0
        prev = None
        for tok in sched:
            if tok == "W":
                k("s_waitcnt lgkmcnt(2)")
            elif tok in mf:
                k(mf[tok])
            elif tok == "e":
                k(ex[ne]); ne += 1
            elif tok == "c":
                assert ne >= 2 * nc + 2 and not (prev == "e" and ne == 2 * nc + 2), "cvt too early"
                k(cv[nc]); nc += 1
            elif tok == "n":
                k("s_nop 0")
            elif tok == "K":
                if ph == 0:
                    k(f"v_add_u32 v{VK}, {STG}, v{VK}")
                    k(f"v_and_b32 v{VK}, {R*STG-1}, v{VK}")
                    k("s_barrier")
                if prio and (ph == 0 or prio[ph] != prio[ph - 1]):
                    k(f"s_setprio {prio[ph]}")
                emit(kread(VK, ph))
            elif tok == "V":
                if t % 4 == 0:
                    k(f"v_add_u32 v{VV}, {STG}, v{VV}")
                    k(f"v_and_b32 v{VV}, {R*STG-1}, v{VV}")
                emit(vread(VV, t % 4))
            prev = tok
    k(f"s_add_u32 s{IT}, s{IT}, 1")
    k(f"s_branch {loop}")

    k.label(tail)
    tick(k, 4)
    k("s_waitcnt lgkmcnt(0)")
    emit(sm(Pr(1), Lr(0), Lr(0)) + pv(Pr(1), Or(0), Or(0)))
    k(f"s_add_u32 s{SGB}, s{SGB}, {STG}")
    k(f"s_and_b32 s{SGB}, s{SGB}, {R*STG-1}")
    k(f"s_mov_b32 s{IT}, 8")
    k("s_nop 2")
    k(f"v_cmp_nge_f32 vcc, s{THS}, v{Lr(0)}")
    k(f"s_cbranch_vccnz {slow[1]}")
    fin = k.newlabel("fin")
    k.label(fin)
    k(f"v_rcp_f32 v{T0}, v{Lr(0)}")
    k("s_nop 1")
    k(f"v_mul_f32 v{T0}, {hex(f2i(1.0/VSCALE))}, v{T0}")
    k("s_nop 0")
    for r in range(0, 16, 2):
        k(f"v_pk_mul_f32 {v(Or(0)+r,2)}, {v(Or(0)+r,2)}, {v(T0,2)} op_sel_hi:[1,0]")
    for d in range(8):
        k(f"v_cvt_pk_bf16_f32 v{Pr(0)+d}, v{Or(0)+2*d}, v{Or(0)+2*d+1}")
    k(f"buffer_store_dwordx4 {v(Pr(0),4)}, v{VL}, s[12:15], s30 offen{STF}")
    k(f"buffer_store_dwordx4 {v(Pr(0)+4,4)}, v{VL}, s[12:15], s31 offen{STF}")
    tick(k, 5)
    flush(k, 16, WV, 0)
    flush(k, 16, WV, 7, role=1)
    k("s_endpgm")

    for g in range(2):
        k.label(slow[g])
        k("s_waitcnt lgkmcnt(0)")
        k("s_nop 15")
        od, ld_ = Or(1 - g), Lr(1 - g)
        for r in range(16):
            k(f"v_mov_b32 v{od+r}, v{Or(g)+r}")
        for r in range(4):
            k(f"v_mov_b32 v{ld_+r}, v{Lr(g)+r}")
        k(f"s_sub_u32 s35, s{SGB}, {STG}")
        k(f"s_and_b32 s35, s35, {R*STG-1}")
        k(f"v_add_u32 v{VK}, s35, v{VL}")
        k("s_mov_b32 s36, 0")
        sl = k.newlabel("sl")
        k.label(sl)
        emit(kread(VK, 0) + vread(VK, 0))
        k("s_waitcnt lgkmcnt(0)")
        emit(qk(Sr(0), "0"))
        k("s_nop 15")
        tilemax(Sr(0), T0)
        k(f"v_add_f32 v{T0}, {hex(f2i(OFFS))}, v{T0}")
        k(f"v_max_f32 v{T0}, v{T0}, v{M}")
        k(f"v_sub_f32 v{T0+1}, v{M}, v{T0}")
        k(f"v_exp_f32 v{T0+1}, v{T0+1}")
        k(f"v_mov_b32 v{M}, v{T0}")
        for r in range(16):
            k(f"v_sub_f32 v{Sr(0)+r}, v{Sr(0)+r}, v{M}")
        for r in range(16):
            k(f"v_mul_f32 v{od+r}, v{od+r}, v{T0+1}")
        for r in range(4):
            k(f"v_mul_f32 v{ld_+r}, v{ld_+r}, v{T0+1}")
        expcvt(Sr(0), Pr(0))
        k("s_nop 1")
        emit(pv(Pr(0), od, od) + sm(Pr(0), ld_, ld_))
        k("s_nop 15")
        k(f"v_add_u32 v{VK}, 2048, v{VK}")
        k("s_add_u32 s36, s36, 1")
        k("s_cmp_lt_u32 s36, 4")
        k(f"s_cbranch_scc1 {sl}")
        if g == 1:
            k(f"s_cmp_eq_u32 s{IT}, 8")
            k(f"s_cbranch_scc1 {fin}")
        restart()
        k(f"s_branch {entry[1-g]}")

    k.label(helper)
    k("s_setprio 3")
    HQ = 24
    k(f"s_sub_u32 s{HQ}, s{WV}, 8")
    copier, gemv = k.newlabel("copier"), k.newlabel("gemv")
    k(f"s_cmp_ge_u32 s{HQ}, 2")
    k(f"s_cbranch_scc1 {copier}")
    k(f"s_mul_i32 s25, s{HQ}, {WS_V-WS_K}")
    k("s_add_u32 s25, s25, s23")
    k(f"s_add_u32 s25, s25, {WS_K-WS_Q+8192}")
    k(f"s_lshl_b32 s26, s{HQ}, 13")
    k(f"s_add_u32 s26, s26, {STG}")
    k("s_waitcnt lgkmcnt(0)")
    k.srd_off(8, 6, WS_Q, KVSZ)
    k.srd(16, "s6", "s7", WS_SMALL)
    def stage_issue():
        k("s_mov_b32 m0, s26")
        k("s_add_u32 s27, s25, 4096")
        for q in range(4):
            k(f"buffer_load_dwordx4 v{VL}, s[8:11], s25 offen offset:{1024*q} lds")
        k("s_add_u32 m0, s26, 4096")
        k("s_add_u32 s25, s25, 8192")
        for q in range(4):
            k(f"buffer_load_dwordx4 v{VL}, s[8:11], s27 offen offset:{1024*q} lds")
        k(f"s_add_u32 s26, s26, {STG}")
        k(f"s_and_b32 s26, s26, {R*STG-1}")
    k("s_barrier")
    stage_issue()
    stage_issue()
    k("s_mov_b32 s28, 1")
    hl = k.newlabel("hl")
    k.label(hl)
    k("s_waitcnt vmcnt(8)")
    k("s_barrier")
    stage_issue()
    k("s_add_u32 s28, s28, 1")
    k(f"s_cmp_lt_u32 s28, {NSTG-2}")
    k(f"s_cbranch_scc1 {hl}")
    k("s_waitcnt vmcnt(8)")
    k(f"s_branch {gemv}")

    k.label(copier)
    k(f"s_load_dwordx2 s[40:41], s[0:1], {KA_WO}")
    k(f"s_load_dwordx4 s[44:47], s[0:1], {KA_W1}")
    k(f"s_load_dwordx2 s[52:53], s[0:1], {KA_WMOD}")
    k(f"s_load_dwordx2 s[54:55], s[0:1], {KA_X}")
    k("s_lshl_b32 s38, s2, 1")
    k(f"s_add_u32 s38, s38, s{HQ}")
    k("s_sub_u32 s38, s38, 2")
    k("s_waitcnt lgkmcnt(0)")
    k("s_lshl_b32 s39, s38, 15")
    k(f"s_add_u32 s39, s39, {hex(WS_WT)}")
    k("s_add_u32 s48, s6, s39")
    k("s_addc_u32 s49, s7, 0")
    k("s_mov_b32 s50, 32768")
    k("s_mov_b32 s51, 0x20000")
    k("s_movk_i32 s42, 2048")
    k("s_cmp_ge_u32 s38, 64")
    k("s_cselect_b32 s40, s44, s40")
    k("s_cselect_b32 s41, s45, s41")
    k("s_cselect_b32 s39, 64, 0")
    k(f"s_cselect_b32 s42, {F_*2}, s42")
    k("s_sub_u32 s39, s38, s39")
    k("s_lshr_b32 s43, s39, 2")
    k("s_and_b32 s39, s39, 3")
    k("s_sub_u32 s56, s38, 288")
    k(f"s_mul_hi_u32 s57, s56, {hex(-(-(1 << 32) // 14))}")
    k("s_mul_i32 s58, s57, 14")
    k("s_sub_u32 s56, s56, s58")
    k("s_cmp_ge_u32 s38, 288")
    k("s_cselect_b32 s40, s46, s40")
    k("s_cselect_b32 s41, s47, s41")
    k("s_cselect_b32 s42, 2048, s42")
    k("s_cselect_b32 s43, s57, s43")
    k("s_cselect_b32 s39, s56, s39")
    k("s_mul_i32 s39, s39, s42")
    k("s_lshl_b32 s39, s39, 8")
    k("s_lshl_b32 s43, s43, 7")
    k("s_add_u32 s39, s39, s43")
    k("s_add_u32 s8, s40, s39")
    k("s_addc_u32 s9, s41, 0")
    k("s_mul_i32 s10, s42, 255")
    k("s_add_u32 s10, s10, 128")
    k("s_mov_b32 s11, 0x20000")
    k("s_lshl_b32 s43, s42, 3")
    k("v_lshrrev_b32 v5, 3, v0")
    k("v_and_b32 v6, 7, v0")
    k("v_mul_lo_u32 v7, v5, s42")
    k(f"v_mul_u32_u24 v8, {6144*2}, v5")
    k("v_lshl_add_u32 v8, v6, 4, v8")
    k("v_bfe_u32 v5, v0, 4, 1")
    k("v_lshlrev_b32 v5, 2, v5")
    k("v_xor_b32 v6, v6, v5")
    k("v_lshl_add_u32 v7, v6, 4, v7")
    k.srd(12, "s52", "s53", 1024 * 6144 * 2)
    k.srd(16, "s6", "s7", WS_SMALL)
    k("s_and_b32 s25, s2, 3")
    k("s_lshl_b32 s25, s25, 1")
    k(f"s_add_u32 s25, s25, s{HQ}")
    k("s_sub_u32 s25, s25, 2")
    k(f"s_mul_i32 s25, s25, {128*6144*2}")
    k("s_lshr_b32 s26, s2, 2")
    k("s_lshl_b32 s26, s26, 7")
    k("s_add_u32 s25, s25, s26")
    k("s_add_u32 s25, s25, 4096")
    k(f"s_lshl_b32 s26, s{HQ}, 14")
    k(f"s_add_u32 s26, s26, {GEM - 32768}")
    k("s_mov_b32 s27, 0")
    k("s_mov_b32 s28, 0")
    CBUF = lambda st, q: 16 + (st % 4) * 16 + 4 * q
    DIST = 3
    outstanding = []
    for st in range(14):
        need = [i for i, tg in enumerate(outstanding) if tg == ("ld", st - DIST)]
        k("s_barrier")
        if need:
            k(f"s_waitcnt vmcnt({len([t_ for t_ in outstanding[max(need)+1:] if t_[0] != 'st'])})")
            for q in range(4):
                k(f"buffer_store_dwordx4 {v(CBUF(st-DIST,q),4)}, v{VL}, s[48:51], s28 offen offset:{1024*q} sc0 sc1")
                outstanding.append(("st", st))
            k("s_add_u32 s28, s28, 4096")
        if st < 8:
            for q in range(4):
                k(f"buffer_load_dwordx4 {v(CBUF(st,q),4)}, v7, s[8:11], s27 offen nt")
                k("s_add_u32 s27, s27, s43")
                outstanding.append(("ld", st))
        elif st < 12:
            for q in range(4):
                k("s_mov_b32 m0, s26")
                k("s_add_u32 s26, s26, 1024")
                k(f"buffer_load_dwordx4 v8, s[12:15], s25 offen nt lds")
                k(f"s_add_u32 s25, s25, {8*6144*2}")
                outstanding.append(("dm", st))
        elif st == 12 and o.get("pfx", 1):
            k.srd(12, "s54", "s55", ACT_BYTES)
            k("s_lshl_b32 s25, s38, 13")
            k("s_add_u32 s26, s25, 4096")
            for q in range(8):
                k(f"buffer_load_dwordx4 {v(CBUF(q//4,q%4),4)}, v{VL}, s[12:15], s{25+q//4} offen offset:{1024*(q%4)}")
                outstanding.append(("pf", st))
    k("s_waitcnt vmcnt(0)")

    k.label(gemv)
    AF, BF, DD = 16, 48, 80
    k("v_lshrrev_b32 v5, 4, v0")
    k("v_lshlrev_b32 v6, 4, v5")
    k("s_and_b32 s25, s2, 3")
    k("s_lshl_b32 s26, s25, 9")
    k(f"s_add_u32 s26, s26, {WS_SILU}")
    k("s_barrier")
    for j in range(8):
        k(f"buffer_load_dwordx4 {v(AF+4*j,4)}, v6, s[16:19], s26 offen offset:{64*j}")
    k("v_lshlrev_b32 v7, 10, v5")
    k("v_bfe_u32 v8, v0, 2, 2")
    k("v_lshl_add_u32 v7, v8, 7, v7")
    k("v_and_b32 v8, 3, v0")
    k("v_lshl_add_u32 v7, v8, 3, v7")
    k(f"s_lshl_b32 s27, s{HQ}, 5")
    k(f"s_add_u32 s27, s27, {GEM}")
    k("v_add_u32 v7, s27, v7")
    for j in range(8):
        for t_ in range(2):
            k(f"ds_read_b64_tr_b16 {v(BF+4*j+2*t_,2)}, v7 offset:{4096*j+512*t_}")
        if j == 5:
            k("s_waitcnt lgkmcnt(8)")
    for r in range(4):
        k(f"v_mov_b32 v{DD+r}, 0")
    k(f"s_mul_i32 s25, s25, {MPS}")
    k("s_lshr_b32 s26, s2, 2")
    k("s_lshl_b32 s26, s26, 8")
    k("s_add_u32 s25, s25, s26")
    k(f"s_lshl_b32 s26, s{HQ}, 6")
    k("s_add_u32 s25, s25, s26")
    k(f"s_add_u32 s25, s25, {WS_MODP + 2048*4}")
    k("v_lshlrev_b32 v6, 2, v0")
    k("s_waitcnt vmcnt(0) lgkmcnt(0)")
    k("s_barrier")
    for j in range(8):
        k(f"v_mfma_f32_16x16x32_bf16 {v(DD,4)}, {v(AF+4*j,4)}, {v(BF+4*j,4)}, {v(DD,4)}")
    k("v_cmp_gt_u32 vcc, 16, v0")
    k("s_nop 7")
    k("s_and_saveexec_b64 s[30:31], vcc")
    k(f"buffer_store_dword v{DD}, v6, s[16:19], s25 offen")
    k.label(end)
    k("s_endpgm")
    return k


def gen_touch(name, base, nbytes):
    nwg = nbytes // 65536
    k = K(name, nwg, 256, lds=0, vgpr=96, sgpr=48)
    end = exit_guard(k, nwg)
    k(f"s_load_dwordx2 s[4:5], s[0:1], {KA_WS}")
    k("s_lshl_b32 s3, s2, 16")
    k("v_lshlrev_b32 v1, 4, v0")
    k("s_waitcnt lgkmcnt(0)")
    k.srd_off(8, 4, base, nbytes)
    for i in range(16):
        k(f"buffer_load_dwordx4 {v(8+4*i,4)}, v1, s[8:11], s3 offen")
        k("s_add_u32 s3, s3, 4096")
    k("s_waitcnt vmcnt(0)")
    flush(k, 72)
    k.label(end)
    k("s_endpgm")
    return k


def kernels(o=None):
    o = o or {}
    return ([gen_touch("touch_kernel", 0, 64 << 20)] if o.get("touch") else []) + [gen_mod("mod_kernel", o.get("mod")), gen_ln("ln_kernel", o.get("ln")), gen_gemm("qkv_kernel", "qkv", o.get("qkv")),
            gen_attn("attn_kernel", o.get("attn")), gen_gemm("wo_kernel", "wo", o.get("wo")),
            gen_gemm("w1_kernel", "w1", o.get("w1")), (gen_gemm("w2_kernel", "w2", o.get("w2")) if not o.get("splitw2") else gen_w2s("w2_kernel", o.get("w2")))]


def build():
    ks = kernels()
    return assemble_file(ks, ks)


if __name__ == "__main__":
    out = sys.argv[1] if len(sys.argv) > 1 else "adaLN_cond__softmax_full_mha__dense_activation_relu__prompt.s"
    if len(sys.argv) > 2 and sys.argv[2] == "prof":
        PROFILE = True
    open(out, "w").write(build())
    print("wrote", out)
```

```python
import sys, os, struct
sys.path.insert(0, os.path.dirname(os.path.abspath(__file__)))
from asmlib import K, v, s, a, assemble_file

S_, D_, F_, NH = 2048, 1024, 3584, 32
KA_X, KA_WQKV, KA_WO, KA_BX, KA_W1, KA_W2, KA_C, KA_WMOD, KA_OUT, KA_DBG, KA_WS = [8 * i for i in range(11)]
WS_MODP = 0x000000
WS_RSTD = 0x020000
WS_SILU = 0x024000
WS_ST1 = 0x028000
WS_FLAG = 0x030000
WS_COEFB = 0x02C000
WS_CBF = 0x02D000
WS_UVP = 0x080000
WS_ST2 = 0x040000
WS_SMALL = 0x100000
WS_XT = 0x100000
WS_Q = 0x500000
WS_K = 0x900000
WS_V = 0xD00000
WS_O = 0x1100000
WS_X2 = 0x1500000
WS_Y2 = 0x1900000
WS_H = 0x1D00000
WS_H1 = 0x2B00000
WS_PART = 0x4800000
WS_WT = 0x3000000
ACT_BYTES = S_ * D_ * 2
H_BYTES = S_ * F_ * 2
LOG2E = 1.4426950408889634
VSCALE = 2.0 ** 32
MPS = 6144 * 4


def f2i(x):
    return struct.unpack("<I", struct.pack("<f", x))[0]


PROFILE = False
STF = " sc0 sc1"
WS_PROF = 0x8000000
_kidx = {}
NST = 7


def exit_guard(k, nwg):
    end = k.newlabel("end")
    if PROFILE:
        k("s_memrealtime s[80:81]")
        k("s_memtime s[82:83]")
    k(f"s_cmp_ge_u32 s2, {nwg}")
    k(f"s_cbranch_scc1 {end}")
    if PROFILE:
        _kidx.setdefault(k.name, len(_kidx))
        k(f"s_load_dwordx2 s[84:85], s[0:1], {KA_WS if PROFILE != 2 else KA_DBG}")
        k("s_mov_b32 s90, s2")
        for i in range(NST):
            k(f"s_mov_b32 s{64+2*i}, 0")
        k.sgpr = 96
    return end


def tick(k, i):
    if PROFILE:
        k(f"s_memtime s[{64+2*i}:{65+2*i}]")


def flush(k, tmpv, wave_sgpr=None, wave=0, role=0):
    if not PROFILE:
        return
    if PROFILE == 2:
        if role:
            return
        i = _kidx[k.name]
        sk = k.newlabel("st")
        if wave_sgpr is not None:
            k(f"s_cmp_lg_u32 s{wave_sgpr}, {wave}")
            k(f"s_cbranch_scc1 {sk}")
        k("s_cmp_lg_u32 s90, 0")
        k(f"s_cbranch_scc1 {sk}")
        k("s_mov_b64 exec, 1")
        k("s_waitcnt vmcnt(0)")
        k("s_memrealtime s[86:87]")
        k("s_memtime s[88:89]")
        k("s_waitcnt lgkmcnt(0)")
        k(f"s_add_u32 s92, s84, {512*(6-i)}")
        k("s_addc_u32 s93, s85, 0")
        k("s_mov_b32 s94, 64")
        k("s_mov_b32 s95, 0x20000")
        k("s_sub_u32 s86, s86, s80")
        k("s_lshl_b32 s86, s86, 20")
        k("s_sub_u32 s88, s88, s82")
        k("s_or_b32 s86, s86, s88")
        k(f"v_mov_b32 v{tmpv}, s80")
        k(f"v_mov_b32 v{tmpv+1}, s86")
        k(f"v_mov_b32 v{tmpv+2}, 0")
        k(f"buffer_store_dword v{tmpv}, v{tmpv+2}, s[92:95], 0 offen offset:{4*i}")
        k(f"buffer_store_dword v{tmpv+1}, v{tmpv+2}, s[92:95], 0 offen offset:{32+4*i}")
        k.label(sk)
        return
    sk = k.newlabel("st")
    if wave_sgpr is not None:
        k(f"s_cmp_lg_u32 s{wave_sgpr}, {wave}")
        k(f"s_cbranch_scc1 {sk}")
    k("s_mov_b64 exec, -1")
    k("s_waitcnt vmcnt(0)")
    k("s_memrealtime s[86:87]")
    k("s_memtime s[88:89]")
    k("s_waitcnt lgkmcnt(0)")
    k(f"s_add_u32 s92, s84, {hex(WS_PROF + _kidx[k.name] * 0x20000)}")
    k("s_addc_u32 s93, s85, 0")
    k("s_mov_b32 s94, 0x20000")
    k("s_mov_b32 s95, 0x20000")
    k("s_lshl_b32 s91, s90, 7")
    srcs = [80, 82, 86, 88] + [64 + 2 * i for i in range(NST)] + [64]
    for j, sr in enumerate(srcs):
        k(f"v_mov_b32 v{tmpv+j}, s{sr}")
    k(f"v_mov_b32 v{tmpv+12}, 0")
    for j in range(3):
        k(f"buffer_store_dwordx4 {v(tmpv+4*j,4)}, v{tmpv+12}, s[92:95], s91 offen offset:{64*role+16*j}")
    k.label(sk)


CODEPF = 1


def code_pf(k, target, idx, va, sa=60):
    if not CODEPF:
        return
    here = k.newlabel("pc")
    k(f"s_getpc_b64 s[{sa}:{sa+1}]")
    k.label(here)
    k(f"s_add_u32 s{sa}, s{sa}, {target}-{here}")
    k(f"s_addc_u32 s{sa+1}, s{sa+1}, 0")
    k(f"v_lshlrev_b32 v{va}, 7, v{idx}")
    k(f"v_min_u32 v{va}, .Ltext_end-{target}-128, v{va}")
    k(f"v_mov_b32 v{va+1}, s{sa+1}")
    k(f"v_add_co_u32 v{va}, vcc, s{sa}, v{va}")
    k("s_nop 1")
    k(f"v_addc_co_u32 v{va+1}, vcc, 0, v{va+1}, vcc")
    k(f"global_load_dword v{va+2}, v[{va}:{va+1}], off")
    k(f"global_load_dword v{va+3}, v[{va}:{va+1}], off offset:64")


def half_reduce(k, r, tmp, op="v_add_f32"):
    k(f"v_mov_b32 v{tmp}, v{r}")
    k("s_nop 1")
    k(f"v_permlane32_swap_b32 v{r}, v{tmp}")
    k("s_nop 1")
    k(f"{op} v{r}, v{r}, v{tmp}")


def row8_reduce(k, r, tmp):
    k("s_nop 1")
    k(f"v_add_f32_dpp v{r}, v{r}, v{r} row_ror:8 row_mask:0xf bank_mask:0xf")
    k(f"v_mov_b32 v{tmp}, v{r}")
    k("s_nop 1")
    k(f"v_permlane16_swap_b32 v{r}, v{tmp}")
    k("s_nop 1")
    k(f"v_add_f32 v{r}, v{r}, v{tmp}")
    half_reduce(k, r, tmp)


def round_bf16(k, r):
    k(f"v_cvt_pk_bf16_f32 v{r}, v{r}, v{r}")
    k(f"v_and_b32 v{r}, 0xffff0000, v{r}")


def gemv_addr(k, ld, task):
    k(f"s_and_b32 s22, s{task}, 3")
    k(f"s_lshr_b32 s23, s{task}, 2")
    k("v_and_b32 v1, 7, v0")
    k("v_lshrrev_b32 v2, 3, v0")
    k(f"v_mul_u32_u24 v3, {ld}, v2")
    k("v_lshl_add_u32 v3, v1, 4, v3")
    k(f"s_mul_i32 s24, s22, {256*ld}")
    k("s_lshl_b32 s25, s23, 7")
    k("s_add_u32 s24, s24, s25")


def gemv_loads(k, ld, W):
    for i in range(8):
        k(f"buffer_load_dwordx4 {v(W+4*i,4)}, v3, s[8:11], s24 offen nt")
        if i < 7:
            k(f"s_add_u32 s24, s24, {32*ld}")


GPITCH = 80


def gemv_finish(k, nvec, W, C, T, A, ldsoff, end, out_base, part_stride, vec_stride, hook=None):
    k("v_lshrrev_b32 v5, 4, v0")
    k("v_lshlrev_b32 v5, 2, v5")
    k(f"v_mul_u32_u24 v6, {8*GPITCH}, v1")
    k("v_add_u32 v5, v5, v6")
    for i in range(8):
        k(f"s_waitcnt vmcnt({7-i})")
        for d in range(4):
            src = W + 4 * i + d
            k(f"v_lshlrev_b32 v{T}, 16, v{src}")
            k(f"v_and_b32 v{T+1}, 0xffff0000, v{src}")
            op = "v_mul_f32" if i == 0 else "v_fmac_f32"
            for vec in range(nvec):
                k(f"{op} v{A+8*vec+2*d}, v{T}, v{C+8*vec+i}")
                k(f"{op} v{A+8*vec+2*d+1}, v{T+1}, v{C+8*vec+i}")
    k("s_nop 1")
    for r in range(8 * nvec):
        k(f"v_add_f32_dpp v{A+r}, v{A+r}, v{A+r} row_ror:8 row_mask:0xf bank_mask:0xf")
    for r in range(8 * nvec):
        k(f"ds_write_b32 v5, v{A+r} offset:{ldsoff + (r//8)*64*GPITCH + (r%8)*GPITCH}")
    if hook:
        hook()
    k("s_waitcnt lgkmcnt(0)")
    k("s_barrier")
    k(f"v_cmp_gt_u32 vcc, {64*nvec}, v0")
    k("s_and_saveexec_b64 s[30:31], vcc")
    k(f"s_cbranch_execz {end}")
    k(f"v_mul_u32_u24 v5, {GPITCH}, v0")
    for r in range(4):
        k(f"ds_read_b128 {v(8+4*r,4)}, v5 offset:{ldsoff+16*r}")
    k("v_and_b32 v2, 63, v0")
    k("v_lshlrev_b32 v2, 2, v2")
    if nvec == 2:
        k("v_lshrrev_b32 v3, 6, v0")
        k(f"v_mul_u32_u24 v3, {vec_stride}, v3")
        k("v_add_u32 v2, v2, v3")
    k(f"s_mul_i32 s24, s22, {part_stride}")
    k("s_lshl_b32 s25, s23, 8")
    k("s_add_u32 s24, s24, s25")
    k(f"s_add_u32 s24, s24, {out_base}")
    k("s_waitcnt lgkmcnt(0)")
    w = 16
    while w > 1:
        w //= 2
        for r in range(w):
            k(f"v_add_f32 v{8+r}, v{8+r}, v{8+w+r}")
    k(f"buffer_store_dword v8, v2, s[16:19], s24 offen")


def prefetch_qkv(k, task, flag="", nowait=False):
    k(f"s_load_dwordx2 s[4:5], s[0:1], {KA_WQKV}")
    k(f"s_lshl_b32 s3, s{task}, 15")
    k("v_lshlrev_b32 v1, 4, v0")
    k("s_waitcnt lgkmcnt(0)")
    k.srd(8, "s4", "s5", 1024 * 6144)
    for i in range(8):
        k(f"buffer_load_dwordx4 {v(8+4*i,4)}, v1, s[8:11], s3 offen{flag}")
        k("s_add_u32 s3, s3, 4096")
    if nowait:
        k("s_endpgm")
    k("s_waitcnt vmcnt(0)")


def prefetch_qkv_l2(k, task, flag=" nt"):
    k(f"s_load_dwordx2 s[4:5], s[0:1], {KA_WQKV}")
    k(f"s_bfe_u32 s22, s{task}, 0x20001")
    k("s_lshl_b32 s22, s22, 9")
    k(f"s_lshr_b32 s23, s{task}, 3")
    k(f"s_mul_hi_u32 s24, s23, {hex(-(-(1 << 32) // 3))}")
    k("s_mul_i32 s25, s24, 3")
    k("s_sub_u32 s25, s23, s25")
    k("s_lshl_b32 s25, s25, 11")
    k("s_add_u32 s22, s22, s25")
    k(f"s_mul_i32 s24, s24, {64*6144}")
    k("s_add_u32 s3, s22, s24")
    k("v_lshrrev_b32 v1, 5, v0")
    k("v_mul_u32_u24 v1, 6144, v1")
    k("v_and_b32 v2, 31, v0")
    k("v_lshl_add_u32 v1, v2, 4, v1")
    k("s_waitcnt lgkmcnt(0)")
    k.srd(8, "s4", "s5", 1024 * 6144)
    for i in range(8):
        k(f"buffer_load_dwordx4 {v(8+4*i,4)}, v1, s[8:11], s3 offen{flag}")
        k(f"s_add_u32 s3, s3, {8*6144}")
    k("s_waitcnt vmcnt(0)")


def gen_mod(name, o=None):
    o = o or {}
    NG, NX = 256, 256
    NPF = o.get("pf", 96)
    nwg = NG + NX + NPF
    k = K(name, nwg, 256, lds=64 * GPITCH, vgpr=80, sgpr=48)
    end = exit_guard(k, nwg)
    xr, pf = k.newlabel("xr"), k.newlabel("pf")
    if NPF:
        k(f"s_cmp_ge_u32 s2, {NG+NX}")
        k(f"s_cbranch_scc1 {pf}")
    k(f"s_load_dwordx2 s[20:21], s[0:1], {KA_WS}")
    k(f"s_cmp_ge_u32 s2, {NG}")
    k(f"s_cbranch_scc1 {xr}")
    k(f"s_load_dwordx4 s[4:7], s[0:1], {KA_C}")
    ld = 6144 * 2
    k("s_add_u32 s3, s2, 64")
    k("s_cmp_lt_u32 s2, 128")
    k("s_cselect_b32 s3, s2, s3")
    gemv_addr(k, ld, 3)
    k("v_lshlrev_b32 v4, 1, v2")
    k("s_lshl_b32 s25, s22, 9")
    k("s_waitcnt lgkmcnt(0)")
    k.srd(8, "s6", "s7", 1024 * ld)
    k.srd(12, "s4", "s5", 2048)
    W, C, T, A = 8, 40, 48, 56
    for i in range(8):
        k(f"buffer_load_ushort v{C+i}, v4, s[12:15], s25 offen offset:{64*i}")
    gemv_loads(k, ld, W)
    k.srd_off(16, 20, 0, WS_SMALL)
    k("s_waitcnt vmcnt(8)")
    for i in range(8):
        k(f"v_lshlrev_b32 v{C+i}, 16, v{C+i}")
    for i in range(8):
        k(f"v_mul_f32 v{T+i}, {hex(f2i(-LOG2E))}, v{C+i}")
    for i in range(8):
        k(f"v_exp_f32 v{T+i}, v{T+i}")
    for i in range(8):
        k(f"v_add_f32 v{T+i}, 1.0, v{T+i}")
    for i in range(8):
        k(f"v_rcp_f32 v{T+i}, v{T+i}")
    for i in range(8):
        k(f"v_mul_f32 v{C+i}, v{C+i}, v{T+i}")
    for i in range(8):
        round_bf16(k, C + i)

    def silu_store():
        sk = k.newlabel("nosilu")
        k("s_cmp_lg_u32 s23, 0")
        k(f"s_cbranch_scc1 {sk}")
        k("s_lshl_b32 s25, s22, 9")
        k(f"s_add_u32 s25, s25, {WS_SILU}")
        for i in range(8):
            k(f"buffer_store_short_d16_hi v{C+i}, v4, s[16:19], s25 offen offset:{64*i}")
        k.label(sk)
    gemv_finish(k, 1, W, C, T, A, 0, end, WS_MODP, MPS, 0, silu_store)
    flush(k, 64)
    k("s_endpgm")

    k.label(xr)
    k(f"s_load_dwordx2 s[4:5], s[0:1], {KA_X}")
    k(f"s_sub_u32 s3, s2, {NG}")
    k("s_and_b32 s22, s3, 7")
    k("s_lshr_b32 s23, s3, 5")
    k("s_lshl_b32 s23, s23, 3")
    k("s_add_u32 s22, s22, s23")
    k("s_lshl_b32 s22, s22, 2")
    k("s_bfe_u32 s23, s3, 0x20003")
    k("s_add_u32 s22, s22, s23")
    k("v_lshrrev_b32 v1, 5, v0")
    k("v_and_b32 v2, 31, v0")
    k("v_lshlrev_b32 v3, 4, v2")
    k("v_lshl_add_u32 v3, v1, 11, v3")
    k("s_lshl_b32 s23, s22, 14")
    k("s_waitcnt lgkmcnt(0)")
    k.srd(8, "s4", "s5", ACT_BYTES)
    X, XF = 8, 24
    for i in range(4):
        k(f"buffer_load_dwordx4 {v(X+4*i,4)}, v3, s[8:11], s23 offen offset:{512*i}{o.get('xflag', ' nt')}")
    k.srd_off(16, 20, 0, WS_SMALL)
    k("v_lshlrev_b32 v4, 3, v1")
    k("s_lshl_b32 s22, s22, 6")
    k(f"s_add_u32 s22, s22, {WS_ST1}")

    def red32(r, tmp):
        for rot in (1, 2, 4, 8):
            k("s_nop 1")
            k(f"v_add_f32_dpp v{r}, v{r}, v{r} row_ror:{rot} row_mask:0xf bank_mask:0xf")
        k(f"v_mov_b32 v{tmp}, v{r}")
        k("s_nop 1")
        k(f"v_permlane16_swap_b32 v{r}, v{tmp}")
        k("s_nop 1")
        k(f"v_add_f32 v{r}, v{r}, v{tmp}")
    for i in range(4):
        k(f"s_waitcnt vmcnt({3-i})")
        for d in range(4 * i, 4 * i + 4):
            k(f"v_lshlrev_b32 v{XF+2*d}, 16, v{X+d}")
            k(f"v_and_b32 v{XF+2*d+1}, 0xffff0000, v{X+d}")
        for d in range(4 * i, 4 * i + 4):
            ac = 58 + 2 * (d % 2)
            if d < 2:
                k(f"v_mov_b32 v{ac}, v{XF+2*d}")
                k(f"v_mov_b32 v{ac+1}, v{XF+2*d+1}")
            else:
                k(f"v_pk_add_f32 {v(ac,2)}, {v(ac,2)}, {v(XF+2*d,2)}")
    k("v_pk_add_f32 v[58:59], v[58:59], v[60:61]")
    k("v_add_f32 v58, v58, v59")
    red32(58, 59)
    k(f"v_mul_f32 v56, {hex(f2i(-1.0/1024))}, v58")
    for d in range(16):
        k(f"v_pk_add_f32 {v(XF+2*d,2)}, {v(XF+2*d,2)}, v[56:57] op_sel_hi:[1,0]")
    for d in range(16):
        ac = 58 + 2 * (d % 2)
        if d < 2:
            k(f"v_pk_mul_f32 {v(ac,2)}, {v(XF+2*d,2)}, {v(XF+2*d,2)}")
        else:
            k(f"v_pk_fma_f32 {v(ac,2)}, {v(XF+2*d,2)}, {v(XF+2*d,2)}, {v(ac,2)}")
    k("v_pk_add_f32 v[58:59], v[58:59], v[60:61]")
    k("v_add_f32 v58, v58, v59")
    red32(58, 59)
    k(f"v_mov_b32 v62, {hex(f2i(1e-5))}")
    k(f"v_fmac_f32 v62, {hex(f2i(1.0/1024))}, v58")
    k("v_rsq_f32 v62, v62")
    k("v_cmp_eq_u32 vcc, 0, v2")
    k("v_mul_f32 v63, v56, v62")
    k("s_and_saveexec_b64 s[30:31], vcc")
    k("buffer_store_dwordx2 v[62:63], v4, s[16:19], s22 offen")
    flush(k, 64)
    k("s_endpgm")
    if NPF:
        k.label(pf)
        k(f"s_sub_u32 s3, s2, {NG+NX}")
        code_pf(k, "ln_kernel", 0, 44, 40)
        prefetch_qkv(k, 3, nowait=o.get("nowait"))
        flush(k, 64)
    k.label(end)
    k("s_endpgm")
    return k


def sum4_round(k, b, n, plus1):
    for e in range(n):
        k(f"v_add_f32 v{b+e}, v{b+e}, v{b+n+e}")
        k(f"v_add_f32 v{b+2*n+e}, v{b+2*n+e}, v{b+3*n+e}")
    for e in range(n):
        k(f"v_add_f32 v{b+e}, v{b+e}, v{b+2*n+e}")
    for e in range(n):
        round_bf16(k, b + e)
    if plus1:
        for e in range(n):
            k(f"v_add_f32 v{b+e}, 1.0, v{b+e}")
        for e in range(n):
            round_bf16(k, b + e)


def gen_ln(name, o=None):
    o = o or {}
    NX, NPF = 256, o.get("pf", 96)
    nwg = NX + NPF
    k = K(name, nwg, 256, lds=2048, vgpr=128, sgpr=48)
    end = exit_guard(k, nwg)
    pf = k.newlabel("pf")
    if NPF:
        k(f"s_cmp_ge_u32 s2, {NX}")
        k(f"s_cbranch_scc1 {pf}")
    k(f"s_load_dwordx2 s[20:21], s[0:1], {KA_WS}")
    k(f"s_load_dwordx2 s[4:5], s[0:1], {KA_X}")
    k("s_and_b32 s22, s2, 7")
    k("s_lshr_b32 s23, s2, 5")
    k("s_lshl_b32 s23, s23, 3")
    k("s_add_u32 s22, s22, s23")
    k("s_bfe_u32 s23, s2, 0x20003")
    k("v_and_b32 v1, 7, v0")
    k("v_lshrrev_b32 v3, 6, v0")
    k("v_lshl_add_u32 v1, v3, 3, v1")
    k("v_bfe_u32 v6, v0, 4, 2")
    k("v_bfe_u32 v7, v0, 3, 1")
    k("v_lshlrev_b32 v5, 5, v6")
    k("v_lshl_add_u32 v5, v7, 3, v5")
    k("v_lshl_add_u32 v5, v1, 11, v5")
    k("s_lshl_b32 s24, s22, 16")
    k("s_lshl_b32 s25, s23, 9")
    k("s_add_u32 s24, s24, s25")
    k("v_lshlrev_b32 v4, 7, v6")
    k("v_lshl_add_u32 v4, v7, 6, v4")
    k("v_lshlrev_b32 v6, 12, v6")
    k("v_lshl_add_u32 v6, v7, 9, v6")
    k("v_lshl_add_u32 v6, v1, 4, v6")
    k("v_and_b32 v2, 127, v0")
    k("v_lshlrev_b32 v2, 3, v2")
    k("v_lshrrev_b32 v7, 7, v0")
    k("v_xor_b32 v3, 1, v7")
    k("v_lshl_add_u32 v2, v3, 12, v2")
    k("s_lshl_b32 s26, s23, 10")
    k("v_lshlrev_b32 v1, 3, v1")
    k("s_lshl_b32 s27, s22, 8")
    k(f"s_add_u32 s27, s27, {WS_ST1}")
    k("s_waitcnt lgkmcnt(0)")
    k.srd_off(12, 20, 0, WS_SMALL)
    k.srd(8, "s4", "s5", ACT_BYTES)
    X, XF, P0, PP, ST = 8, 24, 64, 56, 126
    for part in range(4):
        k(f"buffer_load_dwordx2 {v(PP+2*part,2)}, v2, s[12:15], s26 offen")
        k(f"s_add_u32 s26, s26, {MPS}")
    k(f"buffer_load_dwordx2 {v(ST,2)}, v1, s[12:15], s27 offen")
    for i in range(4):
        for j in range(2):
            k(f"buffer_load_dwordx2 {v(X+4*i+2*j,2)}, v5, s[8:11], s24 offen offset:{128*i+16*j}{o.get('xflag', '')}")
    k.srd_off(32, 20, WS_H1, ACT_BYTES)
    k("s_lshr_b32 s24, s22, 2")
    k("s_lshl_b32 s24, s24, 18")
    k("s_lshl_b32 s25, s23, 16")
    k("s_add_u32 s24, s24, s25")
    k("s_and_b32 s25, s22, 3")
    k("s_lshl_b32 s25, s25, 10")
    k("s_add_u32 s24, s24, s25")
    for i in range(1, 4):
        k(f"s_add_u32 s{24+i}, s24, {16384*i}")
    k("v_bfe_u32 v100, v0, 3, 4")
    k("v_lshlrev_b32 v100, 7, v100")
    k("v_bfe_u32 v101, v0, 1, 1")
    k("v_lshl_add_u32 v100, v101, 6, v100")
    k("v_lshl_add_u32 v100, v7, 5, v100")
    k("v_bfe_u32 v101, v0, 2, 1")
    k("v_lshl_add_u32 v100, v101, 4, v100")
    k("v_and_b32 v101, 1, v0")
    k("v_lshl_add_u32 v100, v101, 3, v100")
    k("v_cvt_f32_u32 v3, v3")
    k("s_waitcnt vmcnt(9)")
    sum4_round(k, PP, 2, False)
    for e in range(2):
        k(f"v_add_f32 v{PP+e}, v3, v{PP+e}")
    for e in range(2):
        round_bf16(k, PP + e)
    k(f"ds_write_b64 v100, {v(PP,2)}")
    k("s_waitcnt lgkmcnt(0)")
    k("s_barrier")
    for i in range(3):
        for q in range(4):
            k(f"ds_read_b128 {v(P0+16*i+4*q,4)}, v4 offset:{512*i+16*q}")
    for i in range(4):
        k(f"s_waitcnt vmcnt({6-2*i})" if i == 0 else f"s_waitcnt vmcnt({6-2*i})")
        for d in range(4 * i, 4 * i + 4):
            k(f"v_lshlrev_b32 v{XF+2*d}, 16, v{X+d}")
            k(f"v_and_b32 v{XF+2*d+1}, 0xffff0000, v{X+d}")
        for d in range(4 * i, 4 * i + 4):
            k(f"v_pk_fma_f32 {v(XF+2*d,2)}, {v(XF+2*d,2)}, {v(ST,2)}, {v(ST,2)} op_sel:[0,0,1] op_sel_hi:[1,0,1]")
    for i in range(4):
        pb = P0 + 16 * (i % 3)
        k(f"s_waitcnt lgkmcnt({[8, 8, 4, 0][i]})")
        for d in range(4):
            k(f"v_pk_fma_f32 {v(XF+8*i+2*d,2)}, {v(XF+8*i+2*d,2)}, {v(pb+2*d,2)}, {v(pb+8+2*d,2)}")
        if i == 0:
            for q in range(4):
                k(f"ds_read_b128 {v(P0+4*q,4)}, v4 offset:{512*3+16*q}")
        for d in range(4):
            k(f"v_cvt_pk_bf16_f32 v{X+4*i+d}, v{XF+8*i+2*d}, v{XF+8*i+2*d+1}")
        k(f"buffer_store_dwordx4 {v(X+4*i,4)}, v6, s[32:35], s{24+i} offen{STF}")
    k("v_mov_b32 v2, 0")
    k("v_lshlrev_b32 v3, 2, v0")
    k("s_lshl_b32 s24, s2, 6")
    k(f"s_add_u32 s24, s24, {WS_FLAG}")
    k("v_cmp_gt_u32 vcc, 16, v0")
    k("s_and_saveexec_b64 s[30:31], vcc")
    k(f"s_cbranch_execz {end}")
    k(f"buffer_store_dword v2, v3, s[12:15], s24 offen{STF}")
    flush(k, 64)
    k("s_endpgm")
    if NPF:
        k.label(pf)
        assert NPF >= 8
        nf = k.newlabel("nofin")
        k(f"s_cmp_ge_u32 s2, {NX+8}")
        k(f"s_cbranch_scc1 {nf}")
        k(f"s_load_dwordx2 s[20:21], s[0:1], {KA_WS}")
        k(f"s_sub_u32 s22, s2, {NX}")
        k("v_lshlrev_b32 v2, 2, v0")
        k("v_lshlrev_b32 v3, 1, v0")
        k("s_lshl_b32 s23, s22, 10")
        k("s_cmp_ge_u32 s22, 4")
        k("s_cselect_b32 s25, 1.0, 0")
        k("s_waitcnt lgkmcnt(0)")
        k.srd_off(12, 20, 0, WS_SMALL)
        for part in range(4):
            k(f"s_add_u32 s24, s23, {WS_MODP + 3072*4 + part*MPS}")
            k(f"buffer_load_dword v{48+part}, v2, s[12:15], s24 offen")
        k(f"s_add_u32 s24, s23, {WS_CBF}")
        k("s_lshr_b32 s23, s23, 1")
        k(f"s_add_u32 s23, s23, {WS_COEFB}")
        k("s_waitcnt vmcnt(0)")
        sum4_round(k, 48, 1, False)
        k("v_add_f32 v48, s25, v48")
        round_bf16(k, 48)
        k(f"buffer_store_dword v48, v2, s[12:15], s24 offen{STF}")
        k(f"buffer_store_short_d16_hi v48, v3, s[12:15], s23 offen{STF}")
        k.label(nf)
        k(f"s_add_u32 s3, s2, {(192 - NPF - NX) & 0xffffffff}")
        prefetch_qkv(k, 3, nowait=o.get("nowait"))
        flush(k, 64)
    k.label(end)
    k("s_endpgm")
    return k


def split_hilo(k, x, hi, lo):
    k(f"v_cvt_pk_bf16_f32 v{hi}, v{x}, v{x}")
    k(f"v_and_b32 v{hi}, 0xffff0000, v{hi}")
    k(f"v_sub_f32 v{lo}, v{x}, v{hi}")


MI, NJ, WV = 22, 23, 24
X2R = 240
SPIN_MAX = 1 << 17


class Phase:
    def __init__(self, kind, o=None):
        cfg = {
            "qkv": dict(Ktot=1024, NP=3, ldb=3072 * 2, a_off=WS_H1, wptr=4, R=4, D=3, ntn=16, xa=8, xb=4),
            "wo": dict(Ktot=1024, NP=1, ldb=2048, a_off=WS_O, wptr=4, R=5, D=3, ntn=16, xa=4, xb=8, gate=2048),
            "w1": dict(Ktot=1024, NP=4, ldb=F_ * 2, a_off=WS_Y2, wptr=56, R=3, D=2, ntn=14, xa=4, xb=7),
            "w2": dict(Ktot=F_, NP=1, a_off=WS_H, wptr=None, R=5, D=3, ntn=16, xa=4, xb=8, gate=5120),
        }[kind]
        cfg.update(o or {})
        self.kind, self.cfg = kind, cfg
        self.NP, self.R, self.D = cfg["NP"], cfg["R"], cfg["D"]
        self.wide = self.NP > 1
        self.MB, self.NB = (2, self.NP) if self.wide else (1, 2)
        self.NS = cfg["Ktot"] // 64
        self.STAGE = 16384 + self.NP * 8192
        self.TAB = self.R * self.STAGE
        self.LDS = self.TAB + {"qkv": 0, "wo": 1024 + 16384, "w1": 8192, "w2": 1024}[kind]
        assert self.LDS <= 163840
        self.XBUF = self.TAB + 1024
        self.nwg = 16 * cfg["ntn"]

    def decode(self, k):
        xa, xb = self.cfg["xa"], self.cfg["xb"]
        gm = 16 // xa
        k("s_and_b32 s20, s2, 7")
        k("s_lshr_b32 s21, s2, 3")
        k(f"s_and_b32 s22, s20, {gm-1}")
        k(f"s_lshr_b32 s23, s20, {gm.bit_length()-1}")
        k(f"s_and_b32 s20, s21, {xa-1}")
        k(f"s_lshr_b32 s21, s21, {xa.bit_length()-1}")
        k(f"s_mul_i32 s22, s22, {xa}")
        k("s_add_u32 s22, s22, s20")
        k(f"s_mul_i32 s23, s23, {xb}")
        k("s_add_u32 s23, s23, s21")


def flag_addr(k, dst, fset):
    k(f"s_lshl_b32 s{dst}, s{MI}, 8")
    k(f"s_add_u32 s{dst}, s{dst}, {WS_FLAG + fset*4096}")


def flag_load(k, fo, vr):
    k(f"buffer_load_dword v{vr}, v12, s[16:19], s{fo} offen sc0 sc1")


def flag_wait(k, fo, vr, nflags, preloaded=False, sleep=4):
    top, chk, done = k.newlabel("spin"), k.newlabel("chk"), k.newlabel("go")
    k("s_mov_b32 s39, 0")
    mask = (1 << nflags) - 1
    k(f"s_mov_b32 s62, {hex(mask & 0xffffffff)}")
    k(f"s_mov_b32 s63, {hex(mask >> 32)}")
    if preloaded:
        k(f"s_branch {chk}")
    k.label(top)
    flag_load(k, fo, vr)
    k("s_waitcnt vmcnt(0)")
    k.label(chk)
    k(f"v_cmp_eq_u32 vcc, 0, v{vr}")
    k("s_add_u32 s39, s39, 1")
    k("s_and_b64 vcc, vcc, s[62:63]")
    k(f"s_cbranch_scc0 {done}")
    k(f"s_sleep {sleep}")
    k(f"s_cmp_lt_u32 s39, {SPIN_MAX}")
    k(f"s_cbranch_scc1 {top}")
    k.label(done)


def flag_set(k, fset, tmpv):
    flag_addr(k, 29, fset)
    k(f"s_lshl_b32 s30, s{NJ}, 4")
    k("s_add_u32 s29, s29, s30")
    k(f"s_lshl_b32 s30, s{WV}, 2")
    k("s_add_u32 s29, s29, s30")
    k(f"v_mov_b32 v{tmpv}, 0")
    k(f"v_mov_b32 v{tmpv+1}, 1")
    k("s_mov_b64 exec, 1")
    k(f"buffer_store_dword v{tmpv+1}, v{tmpv}, s[16:19], s29 offen sc0 sc1")
    k("s_mov_b64 exec, -1")


def row_stats_loads(k, ST, lflag):
    k(f"s_lshl_b32 s26, s{MI}, 7")
    k("s_lshl_b32 s27, s25, 5")
    k("s_add_u32 s26, s26, s27")
    k("v_add_u32 v13, s26, v9")
    k("v_lshlrev_b32 v14, 3, v13")
    k("v_lshl_add_u32 v14, v7, 17, v14")
    for q in range(8):
        k(f"s_mov_b32 s27, {WS_ST2 + q*2048*8}")
        k(f"buffer_load_dwordx2 {v(ST+2*q,2)}, v14, s[16:19], s27 offen{lflag}")


def row_stats(k, ST):
    k(f"v_add_f32 v16, v{ST}, v{ST+2}")
    k(f"v_add_f32 v18, v{ST+1}, v{ST+3}")
    for q in range(2, 8):
        k(f"v_add_f32 v16, v16, v{ST+2*q}")
        k(f"v_add_f32 v18, v18, v{ST+2*q+1}")
    half_reduce(k, 16, 17)
    k(f"v_mul_f32 v16, {hex(f2i(-1.0/1024))}, v16")
    k(f"s_mov_b32 s27, {hex(f2i(1.0/64))}")
    k("v_mov_b32 v19, 0")
    for q in range(8):
        k(f"v_fma_f32 v17, v{ST+2*q}, s27, v16")
        k("v_fmac_f32 v19, v17, v17")
    k(f"v_fmac_f32 v18, {hex(f2i(64.0))}, v19")
    half_reduce(k, 18, 17)
    k(f"v_mov_b32 v20, {hex(f2i(1e-5))}")
    k(f"v_fmac_f32 v20, {hex(f2i(1.0/1024))}, v18")
    k("v_sqrt_f32 v21, v20")


def loader_phase(k, P, first, last, nxt=None):
    cfg, kind = P.cfg, P.kind
    NP, R, D, NS, STAGE, TAB = P.NP, P.R, P.D, P.NS, P.STAGE, P.TAB
    fused = not first
    lflag = " sc1" if fused else ""
    LW = 25
    SA_, SW_, SL, CNT = 28, 29, 30, 34
    P.decode(k)
    k(f"s_sub_u32 s{LW}, s{WV}, 4")
    k(f"s_lshl_b32 s26, s{LW}, 12")
    k("v_add_u32 v2, s26, v1")
    k(f"s_mul_i32 s{SA_}, s{MI}, {cfg['Ktot']//16*4096}")
    WV0 = 104
    if cfg["wptr"] is not None:
        ldb = cfg["ldb"]
        k(f"s_mov_b32 s{SW_}, 0")
        k("v_lshrrev_b32 v4, 3, v0")
        k("v_and_b32 v3, 7, v0")
        k("v_bfe_u32 v5, v0, 4, 1")
        k("v_lshlrev_b32 v5, 2, v5")
        k("v_xor_b32 v3, v3, v5")
        k(f"s_lshl_b32 s26, s{LW}, 4")
        k("v_add_u32 v4, s26, v4")
        k(f"v_mul_u32_u24 v4, {ldb}, v4")
        k("v_lshl_add_u32 v4, v3, 4, v4")
        pst = 2048 if kind == "qkv" else 128
        k(f"s_mul_i32 s26, s{NJ}, {128 if kind == 'qkv' else 128*NP}")
        k("v_add_u32 v4, s26, v4")
        for p in range(NP):
            k(f"v_add_u32 v{WV0+2*p}, {p*pst}, v4")
            k(f"v_add_u32 v{WV0+2*p+1}, {p*pst + 8*ldb - 1024}, v4")
        wreg = lambda p, j: WV0 + 2 * p + j
        wstep = 64 * ldb
    else:
        k(f"s_mul_i32 s{SW_}, s{NJ}, {NP*NS*8192}")
        k(f"s_lshl_b32 s26, s{LW}, 11")
        k(f"v_add_u32 v{WV0}, s26, v1")
        wreg = lambda p, j: WV0
        wstep = 8192
    k(f"s_lshl_b32 s31, s{LW}, 12")
    k(f"s_lshl_b32 s32, s{LW}, 11")
    k(f"s_add_u32 s32, s32, 16384")
    k(f"s_mov_b32 s{SL}, 0")
    k(f"s_mov_b32 s{CNT}, 0")
    k("s_mov_b32 s35, 0")
    k("v_lshlrev_b32 v12, 2, v0")
    if first:
        k("s_waitcnt lgkmcnt(0)")
    k.srd_off(8, 6, cfg["a_off"], S_ * cfg["Ktot"] * 2)
    if cfg["wptr"] is not None:
        k.srd(12, f"s{cfg['wptr']}", f"s{cfg['wptr']+1}", cfg["Ktot"] * cfg["ldb"])
    else:
        k.srd_off(12, 6, WS_WT, F_ * 2048)
    k.srd_off(16, 6, 0, WS_SMALL)
    PCS = 4 + 2 * NP
    pmajor = kind == "w2" and fused
    kstep = 4 if pmajor else 1

    def issue_a(sl, sa):
        k(f"s_add_u32 m0, {sl}, s31")
        k("s_nop 0")
        for q in range(4):
            k(f"buffer_load_dwordx4 v2, s[8:11], {sa} offen offset:{1024*q}{lflag} lds")

    def issue_w(sl, sw):
        k(f"s_add_u32 s33, {sl}, s32")
        for p in range(NP):
            k(f"s_add_u32 m0, s33, {p*8192}")
            k("s_nop 0")
            for j in range(2):
                k(f"buffer_load_dwordx4 v{wreg(p,j)}, s[12:15], {sw} offen offset:{1024*j} lds")

    def advance():
        k(f"s_add_u32 s{SA_}, s{SA_}, {16384*kstep}")
        k(f"s_add_u32 s{SW_}, s{SW_}, {wstep*kstep}")
        if pmajor:
            k("s_add_u32 s35, s35, 1")
            k("s_cmp_eq_u32 s35, 14")
            k(f"s_cselect_b32 s27, {55*8192}, 0")
            k("s_cselect_b32 s35, 0, s35")
            k(f"s_sub_u32 s{SW_}, s{SW_}, s27")
            k("s_lshl_b32 s27, s27, 1")
            k(f"s_sub_u32 s{SA_}, s{SA_}, s27")
        k(f"s_add_u32 s{SL}, s{SL}, {STAGE}")
        k(f"s_cmp_eq_u32 s{SL}, {R*STAGE}")
        k(f"s_cselect_b32 s{SL}, 0, s{SL}")
        k(f"s_add_u32 s{CNT}, s{CNT}, 1")

    def issue_stage():
        issue_a(f"s{SL}", f"s{SA_}")
        issue_w(f"s{SL}", f"s{SW_}")
        advance()
    assert D <= R - 1 and PCS * D + 18 <= 63
    FLV = 30
    if not fused:
        D0 = cfg.get("D0", min(2, D))
        pl = k.newlabel("lpro")
        k.label(pl)
        issue_stage()
        k(f"s_cmp_lt_u32 s{CNT}, {D0}")
        k(f"s_cbranch_scc1 {pl}")
        for d in range(D0, D):
            k(f"s_waitcnt vmcnt({PCS*(d-1)})")
            k("s_barrier")
            issue_stage()
            issue_stage()
    else:
        for d in range(D):
            k(f"s_add_u32 s26, s{SW_}, {d*wstep*kstep}")
            issue_w(str(d * STAGE), "s26")
        flag_addr(k, 38, {"w1": 0, "w2": 1}[kind])
        flag_wait(k, 38, FLV, {"w1": 64, "w2": 56}[kind])
        for d in range(D):
            issue_a(f"s{SL}", f"s{SA_}")
            advance()
        for d in range(D - 1):
            k(f"s_waitcnt vmcnt({4*(D-1-d) + PCS*d})")
            k("s_barrier")
            issue_stage()

    def main_loop(upto):
        ml = k.newlabel("lmain")
        k.label(ml)
        k(f"s_waitcnt vmcnt({PCS*(D-1)})")
        k("s_barrier")
        issue_stage()
        k(f"s_cmp_lt_u32 s{CNT}, {upto}")
        k(f"s_cbranch_scc1 {ml}")
    if pmajor:
        main_loop(cfg.get("samp", 10))
        flag_addr(k, 38, 2)
        flag_load(k, 38, FLV)
        main_loop(14)
        assert 14 - cfg.get("samp", 10) >= D
        flag_wait(k, 38, FLV, 56, preloaded=True)
    SIDE = 5
    SG, ST, UV = 32, 36, 52
    if not P.wide:
        main_loop(NS - SIDE)
        k(f"s_lshl_b32 s26, s{NJ}, 8")
        for part in range(4):
            k(f"s_add_u32 s27, s26, {WS_MODP + cfg['gate']*4 + part*MPS}")
            k(f"buffer_load_dword v{SG+part}, v12, s[16:19], s27 offen")
        if kind == "wo":
            k(f"s_mov_b32 m0, {TAB+256}")
            k(f"s_add_u32 s27, s26, {WS_CBF + 4096}")
            k("buffer_load_dword v12, s[16:19], s27 offen lds")
            k.srd(40, "s36", "s37", ACT_BYTES)
            k("v_lshrrev_b32 v13, 3, v0")
            k("v_and_b32 v14, 7, v0")
            k("v_xor_b32 v14, v14, v13")
            k("v_lshlrev_b32 v14, 4, v14")
            k("v_lshl_add_u32 v13, v13, 11, v14")
            k(f"s_lshl_b32 s26, s{MI}, 18")
            k(f"s_lshl_b32 s27, s{LW}, 16")
            k("s_add_u32 s26, s26, s27")
            k(f"s_lshl_b32 s27, s{NJ}, 7")
            k("s_add_u32 s26, s26, s27")
            for f in range(4):
                k(f"s_add_u32 m0, s31, {P.XBUF + 1024*f}")
                k("s_nop 0")
                k(f"buffer_load_dwordx4 v13, s[40:43], s26 offen lds")
                k(f"s_add_u32 s26, s26, {8*2048}")
        else:
            row_stats_loads(k, ST, lflag)
    main_loop(NS)
    if not P.wide:
        assert SIDE >= D
        k(f"v_add_u32 v15, {TAB}, v12")
        sum4_round(k, SG, 1, False)
        k(f"ds_write_b32 v15, v{SG}")
        if kind == "w2":
            row_stats(k, ST)
            k(f"s_lshl_b32 s27, s{LW}, 7")
            k(f"s_add_u32 s27, s27, {TAB+512}")
            k("v_rcp_f32 v20, v21")
            k("v_lshl_add_u32 v15, v9, 2, s27")
            k("ds_write_b32 v15, v20")
        k("s_waitcnt lgkmcnt(0)")
    extra = 0
    if nxt and CODEPF:
        code_pf(k, nxt, 0, 100)
        extra = 2
    if kind == "w1":
        row_stats_loads(k, ST, lflag)
        k(f"s_lshl_b32 s26, s{NJ}, 10")
        k(f"s_lshl_b32 s27, s{LW}, 8")
        k("s_add_u32 s26, s26, s27")
        for vec in range(2):
            for part in range(4):
                k(f"s_add_u32 s27, s26, {WS_UVP + part*2*F_*4 + vec*F_*4}")
                k(f"buffer_load_dword v{UV+4*vec+part}, v12, s[16:19], s27 offen")
        extra += 16
    for t in range(D - 1, 0, -1):
        k(f"s_waitcnt vmcnt({PCS*t+extra})")
        k("s_barrier")
    k(f"s_waitcnt vmcnt({0 if kind == 'w1' else extra})")
    if kind == "w1":
        row_stats(k, ST)
        for vec in range(2):
            b = UV + 4 * vec
            k(f"v_add_f32 v{b}, v{b}, v{b+1}")
            k(f"v_add_f32 v{b+2}, v{b+2}, v{b+3}")
            k(f"v_add_f32 v{b}, v{b}, v{b+2}")
        split_hilo(k, 16, 22, 23)
        split_hilo(k, 21, 24, 25)
        split_hilo(k, UV, 26, 27)
        split_hilo(k, UV + 4, 28, 29)
        k("v_cmp_gt_u32 vcc, 32, v0")
        k("v_cvt_pk_bf16_f32 v60, v22, v22")
        k("v_cvt_pk_bf16_f32 v61, v23, v24")
        k("v_cvt_pk_bf16_f32 v62, v24, v25")
        k("v_mov_b32 v63, 0")
        for r in range(60, 63):
            k(f"v_cndmask_b32 v{r}, 0, v{r}, vcc")
        k("v_cvt_pk_bf16_f32 v64, v26, v27")
        k("v_cvt_pk_bf16_f32 v65, v26, v28")
        k("v_cvt_pk_bf16_f32 v66, v29, v28")
        k("v_mov_b32 v67, 0")
        k(f"s_lshl_b32 s26, s{LW}, 10")
        k(f"s_add_u32 s26, s26, {TAB}")
        k("v_add_u32 v14, s26, v1")
        k("ds_write_b128 v14, v[60:63]")
        k("ds_write_b128 v14, v[64:67] offset:4096")
        k("s_waitcnt lgkmcnt(0)")
    k("s_barrier")
    if not last:
        k("s_barrier")


def compute_phase(k, P, first, last, tk):
    cfg, kind = P.cfg, P.kind
    NP, R, D, NS, STAGE, TAB, MB, NB, wide = P.NP, P.R, P.D, P.NS, P.STAGE, P.TAB, P.MB, P.NB, P.wide
    stf = STF
    WM, WN = 25, 26
    if kind == "w2" and not first:
        k(f"s_mov_b32 s52, s{NJ}")
    P.decode(k)
    if wide:
        k(f"s_lshr_b32 s{WM}, s{WV}, 1")
        k(f"s_and_b32 s{WN}, s{WV}, 1")
    else:
        k(f"s_mov_b32 s{WM}, s{WV}")
    NACC = MB * NB * 16
    ACC = 32
    FR = ACC + NACC
    FA = lambda b, i: FR + b * (MB + NB) * 4 + i * 4
    FW = lambda b, j: FR + b * (MB + NB) * 4 + (MB + j) * 4
    EX = FR + 2 * (MB + NB) * 4
    acc = lambda i, j: ACC + (i * NB + j) * 16
    VA0, VA = 2, 3
    VW0 = [4, 10]
    VW = [5, 11]
    k(f"s_lshl_b32 s27, s{WM}, {(MB*1024).bit_length()-1}")
    k(f"v_add_u32 v{VA0}, s27, v1")
    k("v_bfe_u32 v6, v0, 2, 2")
    k(f"v_lshlrev_b32 v{VW0[0]}, 7, v6")
    k(f"v_lshl_add_u32 v{VW0[0]}, v7, 9, v{VW0[0]}")
    k("v_bfe_u32 v8, v0, 4, 1")
    k(f"v_lshl_add_u32 v{VW0[0]}, v8, 5, v{VW0[0]}")
    k("v_and_b32 v8, 3, v0")
    k(f"v_lshl_add_u32 v{VW0[0]}, v8, 3, v{VW0[0]}")
    k(f"v_add_u32 v{VW0[0]}, 16384, v{VW0[0]}")
    k("v_lshrrev_b32 v8, 1, v6")
    if wide:
        k(f"v_xor_b32 v8, s{WN}, v8")
        k(f"v_lshl_add_u32 v{VW0[0]}, v8, 6, v{VW0[0]}")
    else:
        k("v_xor_b32 v6, 1, v8")
        k(f"v_lshl_add_u32 v{VW0[1]}, v6, 6, v{VW0[0]}")
        k(f"v_lshl_add_u32 v{VW0[0]}, v8, 6, v{VW0[0]}")
    nw = 1 if wide else 2
    ROW0 = 28
    k(f"s_lshl_b32 s{ROW0}, s{MI}, 7")
    k(f"s_lshl_b32 s29, s{WM}, {5 + (MB - 1)}")
    k(f"s_add_u32 s{ROW0}, s{ROW0}, s29")
    for r in range(NACC):
        k(f"v_mov_b32 v{ACC+r}, 0")
    if first:
        k("s_waitcnt lgkmcnt(0)")
        k.srd_off(16, 6, 0, WS_SMALL)
    if not wide:
        G, XR, XF, CBV, RSV = EX, EX + 32, EX + 48, EX + 80, 15
        k(f"v_add_u32 v14, s{ROW0}, v9")
        k(f"v_mov_b32 v13, {TAB}")
        k("v_lshl_add_u32 v13, v7, 4, v13")
        if kind == "wo":
            k(f"s_lshl_b32 s30, s{WM}, 12")
            k(f"s_add_u32 s30, s30, {P.XBUF}")
            k("v_lshl_add_u32 v12, v9, 7, s30")
            k("v_lshl_add_u32 v12, v7, 3, v12")
            k("v_and_b32 v8, 7, v0")
            for c in range(8):
                k(f"v_xor_b32 v{16+c}, {c}, v8")
                k(f"v_lshl_add_u32 v{16+c}, v{16+c}, 4, v12")
        else:
            XR = X2R
            k(f"s_lshl_b32 s30, s{WM}, 7")
            k(f"s_add_u32 s30, s30, {TAB+512}")
            k("v_lshl_add_u32 v16, v9, 2, s30")

    def unpack():
        for d in range(16):
            k(f"v_lshlrev_b32 v{XF+2*d}, 16, v{XR+d}")
            k(f"v_and_b32 v{XF+2*d+1}, 0xffff0000, v{XR+d}")

    def mid_pieces():
        def p_x():
            for c in range(8):
                k(f"ds_read_b64 {v(XR+2*c,2)}, v{16+c}")
        def p_g():
            for q in range(8):
                k(f"ds_read_b128 {v(G+4*q,4)}, v13 offset:{32*q}")
            if kind == "w2":
                k(f"ds_read_b32 v{RSV}, v16")
            unpack()
        def p_cb():
            for q in range(8):
                k(f"ds_read_b128 {v(CBV+4*q,4)}, v13 offset:{256+32*q}")
        def p_scale():
            for r in range(32):
                k(f"v_mul_f32 v{G+r}, v{G+r}, v{RSV}")
        return [p_x, p_g, p_cb] if kind == "wo" else [p_g, p_scale]

    def reads(buf, kb):
        ar = [f"ds_read_b128 {v(FA(buf,i),4)}, v{VA} offset:{kb*4096 + i*1024}" for i in range(MB)]
        wr = []
        for j in range(NB):
            ad, po = (VW[0], j * 8192) if wide else (VW[j], 0)
            for t in range(2):
                wr.append(f"ds_read_b64_tr_b16 {v(FW(buf,j)+2*t,2)}, v{ad} offset:{po + kb*2048 + t*1024}")
        return [ar[0], wr[0], wr[1]] + ar[1:] + wr[2:]

    def mfmas(buf):
        out = []
        for j in range(NB):
            for i in range(MB):
                A_, B_ = v(FW(buf, j), 4), v(FA(buf, i), 4)
                if kind == "qkv" and j == 2:
                    A_, B_ = B_, A_
                out.append(f"v_mfma_f32_32x32x16_bf16 {v(acc(i,j),16)}, {A_}, {B_}, {v(acc(i,j),16)}")
        return out

    def interleave(mf, rd, per):
        rd = list(rd)
        for m in mf:
            k(m)
            for _ in range(per):
                if rd:
                    k(rd.pop(0))
        for r in rd:
            k(r)

    SB, CNT = 34, 35
    k(f"s_mov_b32 s{SB}, 0")
    k(f"s_mov_b32 s{CNT}, 0")
    k(f"v_mov_b32 v{VA}, v{VA0}")
    for h in range(nw):
        k(f"v_mov_b32 v{VW[h]}, v{VW0[h]}")
    if first:
        k("s_setprio 1")
    late_pub = kind == "w2" and not first
    if late_pub:
        k("s_cmp_lt_u32 s2, 224")
        k(f"s_cselect_b32 s53, {cfg.get('pub', 2)}, 99")
    k("s_barrier")
    tick(k, tk)
    for r_ in reads(0, 0):
        k(r_)
    loop, lastl = k.newlabel("loop"), k.newlabel("last")
    k.label(loop)
    per = 2 if wide else 3
    if late_pub:
        pub, pubr = k.newlabel("pub"), k.newlabel("pubret")
        k(f"s_cmp_eq_u32 s{CNT}, s53")
        k(f"s_cbranch_scc1 {pub}")
        k.label(pubr)
    if not wide:
        mw, mwr = k.newlabel("mid"), k.newlabel("midret")
        M0_ = NS - len(mid_pieces())
        assert D >= 3
        k(f"s_cmp_ge_u32 s{CNT}, {M0_}")
        k(f"s_cbranch_scc1 {mw}")
        k.label(mwr)
    for st in range(3):
        k("s_waitcnt lgkmcnt(0)")
        interleave(mfmas(st % 2), reads((st + 1) % 2, st + 1), per)
        if st == 0:
            k(f"s_add_u32 s{SB}, s{SB}, {STAGE}")
            k(f"s_cmp_eq_u32 s{SB}, {R*STAGE}")
            k(f"s_cselect_b32 s{SB}, 0, s{SB}")
    k(f"s_add_u32 s{CNT}, s{CNT}, 1")
    k(f"v_add_u32 v{VA}, s{SB}, v{VA0}")
    for h in range(nw):
        k(f"v_add_u32 v{VW[h]}, s{SB}, v{VW0[h]}")
    k(f"s_cmp_eq_u32 s{CNT}, {NS}")
    k(f"s_cbranch_scc1 {lastl}")
    k("s_waitcnt lgkmcnt(0)")
    mf = mfmas(1)
    k(mf[0])
    k("s_barrier")
    rd = reads(0, 0)
    k(rd[0]); k(rd[1]); k(rd[2])
    interleave(mf[1:], rd[3:], per)
    k(f"s_branch {loop}")
    if late_pub:
        k.label(pub)
        k("s_waitcnt vmcnt(0)")
        k(f"s_mov_b32 s54, s{NJ}")
        k(f"s_mov_b32 s{NJ}, s52")
        flag_set(k, 2, 18)
        k(f"s_mov_b32 s{NJ}, s54")
        k("s_nop 3")
        k(f"s_branch {pubr}")
    if not wide:
        k.label(mw)
        pcs = mid_pieces()
        labs = [k.newlabel("mp") for _ in pcs]
        for i in range(1, len(pcs)):
            k(f"s_cmp_eq_u32 s{CNT}, {M0_+i}")
            k(f"s_cbranch_scc1 {labs[i]}")
        for i, pc in enumerate(pcs):
            k.label(labs[i])
            pc()
            k(f"s_branch {mwr}")
    k.label(lastl)
    if kind == "w1":
        k(f"v_add_u32 v{VA}, {TAB}, v{VA0}")
        k(f"s_lshl_b32 s29, s{WN}, 9")
        k(f"s_add_u32 s29, s29, {TAB+4096}")
        k(f"v_lshl_add_u32 v{VW[0]}, v9, 4, s29")
        rd = [f"ds_read_b128 {v(FA(0,i),4)}, v{VA} offset:{i*1024}" for i in range(MB)]
        rd += [f"ds_read_b128 {v(FW(0,j),4)}, v{VW[0]} offset:{j*1024}" for j in range(NB)]
        k("s_waitcnt lgkmcnt(0)")
        interleave(mfmas(1), rd, per)
        fin = mfmas(0)
    else:
        fin = mfmas(1)
    k("s_waitcnt lgkmcnt(0)")
    k(fin[0])
    if not last:
        k("s_barrier")
    for m in fin[1:]:
        k(m)
    tick(k, tk + 1)

    T = EX
    def pack_block(base, dst):
        for d in range(8):
            k(f"v_cvt_pk_bf16_f32 v{dst+d}, v{base+2*d}, v{base+2*d+1}")
    if kind == "qkv":
        k.srd_off(40, 6, WS_Q, 3 * 0x400000)
        k(f"s_lshl_b32 s29, s{NJ}, 1")
        k(f"s_add_u32 s29, s29, s{WN}")
        k("s_lshl_b32 s29, s29, 17")
        k(f"s_lshl_b32 s30, s{ROW0}, 6")
        k("s_add_u32 s29, s29, s30")
        k(f"s_add_u32 s30, s29, {WS_K-WS_Q}")
        k(f"s_add_u32 s31, s29, {WS_V-WS_Q}")
        k(f"s_mov_b32 s32, {hex(f2i(LOG2E * 32 ** -0.5))}")
        k("s_mov_b32 s33, s32")
        k(f"s_mov_b32 s34, {hex(f2i(VSCALE))}")
        k("s_mov_b32 s35, s34")
        n = 0
        for j in (1, 0, 2):
            for i in range(MB):
                b = acc(i, j)
                if j != 1:
                    for r in range(0, 16, 2):
                        k(f"v_pk_mul_f32 {v(b+r,2)}, {v(b+r,2)}, s[{32+j}:{33+j}]")
                dst = T + 8 * (n % 4)
                n += 1
                pack_block(b, dst)
                for f in range(2):
                    k(f"buffer_store_dwordx4 {v(dst+4*f,4)}, v1, s[40:43], s{29+j} offen offset:{2048*i+1024*f}{stf}")
    elif kind == "w1":
        KBH = F_ // 16
        k.srd_off(40, 6, WS_H, H_BYTES)
        k(f"s_mul_i32 s33, s{MI}, {KBH*4096}")
        k(f"s_lshl_b32 s30, s{NJ}, 16")
        k("s_add_u32 s33, s33, s30")
        k(f"s_lshl_b32 s30, s{WN}, 13")
        k("s_add_u32 s33, s33, s30")
        k(f"s_lshl_b32 s30, s{WM}, 11")
        k("s_add_u32 s33, s33, s30")
        n = 0
        for j in range(NB):
            k(f"s_add_u32 s31, s33, {j*16384}")
            k(f"s_add_u32 s32, s33, {j*16384+4096}")
            for i in range(MB):
                dst = T + 8 * (n % 4)
                n += 1
                pack_block(acc(i, j), dst)
                for d in range(8):
                    k(f"v_pk_max_i16 v{dst+d}, v{dst+d}, 0")
                for f in range(2):
                    k(f"buffer_store_dwordx4 {v(dst+4*f,4)}, v1, s[40:43], s{31+f} offen offset:{1024*i}{stf}")
            if not last and j == cfg.get("pub0", 1):
                k(f"s_waitcnt vmcnt({4*j})")
                flag_set(k, 1, 18)
    else:
        PK = X2R
        if kind == "wo":
            k.srd_off(40, 6, WS_Y2, ACT_BYTES)
            XA = 44
            k(f"s_lshl_b32 s{XA}, s{MI}, 18")
            k(f"s_lshl_b32 s30, s{NJ}, 14")
            k(f"s_add_u32 s{XA}, s{XA}, s30")
            k(f"s_lshl_b32 s30, s{WM}, 10")
            k(f"s_add_u32 s{XA}, s{XA}, s30")
            for f in range(1, 4):
                k(f"s_add_u32 s{XA+f}, s{XA}, {4096*f}")
        else:
            k.srd(40, "s58", "s59", ACT_BYTES)
            k("v_lshlrev_b32 v12, 11, v14")
            k("v_lshl_add_u32 v12, v7, 4, v12")
            k(f"s_lshl_b32 s31, s{NJ}, 7")
            k("s_nop 4")
        for f in range(4):
            for d in range(4 * f, 4 * f + 4):
                k(f"v_pk_fma_f32 {v(XF+2*d,2)}, {v(ACC+2*d,2)}, {v(G+2*d,2)}, {v(XF+2*d,2)}")
            for d in range(4 * f, 4 * f + 4):
                k(f"v_cvt_pk_bf16_f32 v{PK+d}, v{XF+2*d}, v{XF+2*d+1}")
            if kind == "wo":
                for d in range(4 * f, 4 * f + 4):
                    k(f"v_lshlrev_b32 v{XF+2*d}, 16, v{PK+d}")
                    k(f"v_and_b32 v{XF+2*d+1}, 0xffff0000, v{PK+d}")
                for d in range(4 * f, 4 * f + 4):
                    k(f"v_pk_mul_f32 {v(CBV+2*d,2)}, {v(CBV+2*d,2)}, {v(XF+2*d,2)}")
                for d in range(4 * f, 4 * f + 4):
                    k(f"v_cvt_pk_bf16_f32 v{FR+d}, v{CBV+2*d}, v{CBV+2*d+1}")
                k(f"buffer_store_dwordx4 {v(FR+4*f,4)}, v1, s[40:43], s{XA+f} offen{stf}")
            else:
                k("s_nop 1")
                k(f"v_permlane32_swap_b32 v{PK+4*f}, v{PK+4*f+2}")
                k(f"v_permlane32_swap_b32 v{PK+4*f+1}, v{PK+4*f+3}")
                k(f"buffer_store_dwordx4 {v(PK+4*f,4)}, v12, s[40:43], s31 offen offset:{32*f}{cfg.get('ostf', '')}")
        if kind == "wo":
            k(f"v_pk_add_f32 v[16:17], {v(XF,2)}, {v(XF+2,2)}")
            k(f"v_pk_add_f32 v[18:19], {v(XF+4,2)}, {v(XF+6,2)}")
            for d in range(4, 16, 2):
                k(f"v_pk_add_f32 v[16:17], v[16:17], {v(XF+2*d,2)}")
                k(f"v_pk_add_f32 v[18:19], v[18:19], {v(XF+2*d+2,2)}")
            k("v_pk_add_f32 v[16:17], v[16:17], v[18:19]")
            k("v_add_f32 v20, v16, v17")
            half_reduce(k, 20, 16)
            k(f"v_mul_f32 v22, {hex(f2i(-1.0/64))}, v20")
            for r in range(16, 20):
                k(f"v_mov_b32 v{r}, 0")
            for d in range(16):
                k(f"v_pk_add_f32 {v(XF+2*d,2)}, {v(XF+2*d,2)}, v[22:23] op_sel_hi:[1,0]")
            for d in range(16):
                ac = 16 + 2 * (d % 2)
                k(f"v_pk_fma_f32 {v(ac,2)}, {v(XF+2*d,2)}, {v(XF+2*d,2)}, {v(ac,2)}")
            k("v_pk_add_f32 v[16:17], v[16:17], v[18:19]")
            k("v_add_f32 v21, v16, v17")
            half_reduce(k, 21, 16)
            k("v_lshlrev_b32 v12, 3, v14")
            k(f"s_lshl_b32 s35, s{NJ}, 14")
            k(f"s_add_u32 s35, s35, {WS_ST2}")
            k(f"buffer_store_dwordx2 v[20:21], v12, s[16:19], s35 offen{stf}")
            k("s_waitcnt vmcnt(0)")
            flag_set(k, 0, 18)


def gen_chain(name, kinds, o=None, nxt=None):
    o = o or {}
    phases = [Phase(kd, o.get(kd)) for kd in kinds]
    k = K(name, 256, 512, lds=max(max(P.LDS for P in phases), 82 * 1024), vgpr=256, sgpr=96)
    end = exit_guard(k, 256)
    k(f"s_load_dwordx2 s[6:7], s[0:1], {KA_WS}")
    if kinds[0] == "qkv":
        k(f"s_load_dwordx2 s[4:5], s[0:1], {KA_WQKV}")
    else:
        k(f"s_load_dwordx2 s[4:5], s[0:1], {KA_WO}")
        k(f"s_load_dwordx2 s[36:37], s[0:1], {KA_X}")
        k(f"s_load_dwordx2 s[56:57], s[0:1], {KA_W1}")
        k(f"s_load_dwordx2 s[58:59], s[0:1], {KA_OUT}")
    k("v_lshrrev_b32 v1, 6, v0")
    k("v_and_b32 v0, 63, v0")
    k(f"v_readfirstlane_b32 s{WV}, v1")
    k("v_lshlrev_b32 v1, 4, v0")
    k("v_lshrrev_b32 v7, 5, v0")
    k("v_and_b32 v9, 31, v0")
    compute = k.newlabel("compute")
    k(f"s_cmp_lt_u32 s{WV}, 4")
    k(f"s_cbranch_scc1 {compute}")
    n = len(phases)
    for role in range(2):
        if role:
            k.label(compute)
        for i, P in enumerate(phases):
            skip = None
            if P.nwg < 256:
                skip = k.newlabel("skip")
                k(f"s_cmp_ge_u32 s2, {P.nwg}")
                k(f"s_cbranch_scc1 {skip}")
            if role == 0:
                loader_phase(k, P, i == 0, i == n - 1, nxt if i == n - 1 else None)
            else:
                compute_phase(k, P, i == 0, i == n - 1, 1 + 2 * i)
            if skip:
                k.label(skip)
        if role == 0:
            k("s_endpgm")
    flush(k, 16, WV, 0)
    k.label(end)
    k("s_endpgm")
    return k


def gen_attn(name, o=None):
    o = dict(o or {})
    R, NSTG, STG = 4, 16, 16384
    GEM = R * STG
    out_off = o.get("out", WS_O)
    k = K(name, 256, 768, lds=GEM + 65536, vgpr=168, sgpr=64)
    end = exit_guard(k, 256)
    k(f"s_load_dwordx2 s[6:7], s[0:1], {KA_WS}")
    HD, QB, WV = 20, 21, 22
    k("v_lshrrev_b32 v1, 6, v0")
    k("v_and_b32 v0, 63, v0")
    k("s_and_b32 s20, s2, 7")
    k("s_lshl_b32 s20, s20, 2")
    k("s_bfe_u32 s21, s2, 0x20003")
    k("s_add_u32 s20, s20, s21")
    k(f"v_readfirstlane_b32 s{WV}, v1")
    k("s_lshr_b32 s21, s2, 5")
    k("s_lshl_b32 s21, s21, 3")
    VL = 2
    k(f"v_lshlrev_b32 v{VL}, 4, v0")
    k(f"s_lshl_b32 s23, s{HD}, 17")
    helper = k.newlabel("helper")
    k(f"s_cmp_ge_u32 s{WV}, 8")
    k(f"s_cbranch_scc1 {helper}")
    k(f"s_add_u32 s{QB}, s21, s{WV}")
    Sr = lambda b: 16 + 16 * b
    Pr = lambda b: 48 + 8 * b
    Or = lambda b: 64 + 16 * b
    Lr = lambda b: 96 + 4 * b
    CI, Q, KR, VR, ONE, M, T0 = 104, 120, 128, 136, 144, 148, 150
    VK, VV = 3, 4
    OFFS, THR = float(o.get("offs", 96)), 2.0 ** o.get("thr", 8)
    KVSZ = 3 * 0x400000
    def emit(lst):
        for x in lst:
            k(x)
    k(f"s_lshl_b32 s28, s{WV}, 10")
    k("s_add_u32 s24, s23, s28")
    k(f"s_add_u32 s25, s24, {WS_V-WS_Q}")
    k(f"s_add_u32 s24, s24, {WS_K-WS_Q}")
    k(f"s_lshl_b32 s31, s{QB}, 11")
    k("s_add_u32 s30, s23, s31")
    k("s_mov_b32 m0, s28")
    k("s_add_u32 s29, s28, 8192")
    k("s_waitcnt lgkmcnt(0)")
    tick(k, 0)
    k.srd_off(8, 6, WS_Q, KVSZ)
    k(f"buffer_load_dwordx4 v{VL}, s[8:11], s24 offen lds")
    k(f"buffer_load_dwordx4 {v(Q,4)}, v{VL}, s[8:11], s30 offen")
    k("s_mov_b32 m0, s29")
    k(f"buffer_load_dwordx4 {v(Q+4,4)}, v{VL}, s[8:11], s30 offen offset:1024")
    k(f"buffer_load_dwordx4 v{VL}, s[8:11], s25 offen lds")
    k.srd_off(12, 6, out_off, ACT_BYTES)
    k("v_bfe_u32 v5, v0, 2, 1")
    k("v_bfe_u32 v6, v0, 4, 1")
    k("v_cmp_eq_u32 vcc, v5, v6")
    k("v_mov_b32 v5, 0x3f803f80")
    k("s_nop 0")
    k(f"v_cndmask_b32 v{ONE}, 0, v5, vcc")
    for i in range(1, 4):
        k(f"v_mov_b32 v{ONE+i}, v{ONE}")
    for r in range(16):
        k(f"v_mov_b32 v{Or(0)+r}, 0")
    for r in range(4):
        k(f"v_mov_b32 v{Lr(0)+r}, 0")
    THS, SGB, IT = 32, 33, 34
    k(f"s_mov_b32 s{THS}, {hex(f2i(THR))}")
    k(f"s_mov_b32 s{SGB}, 0")
    k(f"s_mov_b32 s{IT}, 0")
    k(f"v_mov_b32 v{VK}, v{VL}")
    k(f"v_mov_b32 v{VV}, v{VL}")
    k(f"s_lshr_b32 s30, s{QB}, 2")
    k("s_lshl_b32 s30, s30, 18")
    k(f"s_lshl_b32 s31, s{HD}, 13")
    k("s_add_u32 s30, s30, s31")
    k(f"s_and_b32 s31, s{QB}, 3")
    k("s_lshl_b32 s31, s31, 10")
    k("s_add_u32 s30, s30, s31")
    k("s_add_u32 s31, s30, 4096")
    tick(k, 1)
    k("s_waitcnt vmcnt(0)")
    tick(k, 2)
    k("s_barrier")
    tick(k, 3)

    def kread(addr, tl, dst=KR):
        return [f"ds_read_b128 {v(dst+4*f,4)}, v{addr} offset:{tl*2048+f*1024}" for f in range(2)]
    def vread(addr, tl):
        return [f"ds_read_b128 {v(VR+4*f,4)}, v{addr} offset:{8192+tl*2048+f*1024}" for f in range(2)]
    def qk(sb, c0, kr=KR):
        return [f"v_mfma_f32_32x32x16_bf16 {v(sb,16)}, {v(kr,4)}, {v(Q,4)}, {c0}",
                f"v_mfma_f32_32x32x16_bf16 {v(sb,16)}, {v(kr+4,4)}, {v(Q+4,4)}, {v(sb,16)}"]
    def pv(pb, od, oc):
        return [f"v_mfma_f32_32x32x16_bf16 {v(od,16)}, {v(VR,4)}, {v(pb,4)}, {v(oc,16)}",
                f"v_mfma_f32_32x32x16_bf16 {v(od,16)}, {v(VR+4,4)}, {v(pb+4,4)}, {v(od,16)}"]
    def sm(pb, ld, lc):
        return [f"v_mfma_f32_16x16x32_bf16 {v(ld,4)}, {v(ONE,4)}, {v(pb,4)}, {v(lc,4)}",
                f"v_mfma_f32_16x16x32_bf16 {v(ld,4)}, {v(ONE,4)}, {v(pb+4,4)}, {v(ld,4)}"]
    def tilemax(sb, dst):
        k(f"v_max3_f32 v{dst}, v{sb}, v{sb+1}, v{sb+2}")
        k(f"v_max3_f32 v{dst+1}, v{sb+3}, v{sb+4}, v{sb+5}")
        for r in range(6, 14, 4):
            k(f"v_max3_f32 v{dst}, v{dst}, v{sb+r}, v{sb+r+1}")
            k(f"v_max3_f32 v{dst+1}, v{dst+1}, v{sb+r+2}, v{sb+r+3}")
        k(f"v_max3_f32 v{dst}, v{dst}, v{sb+14}, v{sb+15}")
        k(f"v_max_f32 v{dst}, v{dst}, v{dst+1}")
        half_reduce(k, dst, dst + 1, "v_max_f32")
    def expcvt(sb, pb):
        for r in range(16):
            k(f"v_exp_f32 v{sb+r}, v{sb+r}")
        k("s_nop 0")
        for d in range(8):
            k(f"v_cvt_pk_bf16_f32 v{pb+d}, v{sb+2*d}, v{sb+2*d+1}")
    def set_ci():
        k(f"v_sub_f32 v{CI}, 0, v{M}")
        for r in range(1, 16):
            k(f"v_mov_b32 v{CI+r}, v{CI}")

    entry = [k.newlabel("it1"), k.newlabel("it5")]
    slow = [k.newlabel("slow0"), k.newlabel("slow1")]
    emit(kread(VK, 0))
    emit(kread(VK, 1, VR))
    k("s_waitcnt lgkmcnt(2)")
    emit(qk(Sr(0), "0"))
    emit(kread(VK, 2))
    k("s_nop 9")
    tilemax(Sr(0), T0)
    k(f"v_add_f32 v{M}, {hex(f2i(OFFS))}, v{T0}")
    set_ci()
    k("s_nop 0")
    k("s_waitcnt lgkmcnt(2)")
    emit(qk(Sr(1), v(CI, 16), VR))
    emit(vread(VV, 0))
    for r in range(16):
        k(f"v_sub_f32 v{Sr(0)+r}, v{Sr(0)+r}, v{M}")
    expcvt(Sr(0), Pr(0))
    k(f"s_branch {entry[0]}")

    def restart():
        set_ci()
        k(f"v_add_u32 v{VK}, s{SGB}, v{VL}")
        k(f"v_add_u32 v{VV}, s{SGB}, v{VL}")
        emit(kread(VK, 0))
        k("s_waitcnt lgkmcnt(0)")
        emit(qk(Sr(0), v(CI, 16)))
        emit(kread(VK, 1))
        k("s_waitcnt lgkmcnt(0)")
        emit(qk(Sr(1), v(CI, 16)))
        emit(kread(VK, 2))
        emit(vread(VV, 0))
        k("s_nop 7")
        expcvt(Sr(0), Pr(0))

    loop = k.newlabel("loop")
    tail = k.newlabel("tail")
    k.label(loop)
    sched = o.get("sched", "W q0 e e e e q1 K e c e c W p0 e e c e s0 e c e p1 V e c e e c s1 e e c c").split()
    assert sched.count("e") == 16 and sched.count("c") == 8
    prio = o.get("prio", (3, 2, 1, 0))
    for it in range(1, 9):
        t = it
        g_prev = ((t - 1) // 4) % 2
        first_of_group = ((t - 1) % 4 == 0)
        od = Or(1 - g_prev)
        oc = Or(g_prev) if first_of_group else od
        ld_ = Lr(1 - g_prev)
        lc = Lr(g_prev) if first_of_group else ld_
        if first_of_group:
            after_s1 = len(sched) - 1 - sched.index("s1")
            k(f"s_add_u32 s{SGB}, s{SGB}, {STG}")
            k(f"s_and_b32 s{SGB}, s{SGB}, {R*STG-1}")
            if after_s1 + 2 < 8:
                k(f"s_nop {8 - after_s1 - 2 - 1}")
            k(f"v_cmp_nge_f32 vcc, s{THS}, v{Lr(g_prev)}")
            k(f"s_cbranch_vccnz {slow[1-g_prev]}")
            k.label(entry[g_prev])
        if it == 8:
            k(f"s_cmp_eq_u32 s{IT}, 7")
            k(f"s_cbranch_scc1 {tail}")
        sb, pb = Sr(t % 2), Pr(t % 2)
        snext = Sr((t + 1) % 2)
        pprev = Pr((t - 1) % 2)
        mf = {}
        mf["q0"], mf["q1"] = qk(snext, v(CI, 16))
        mf["p0"], mf["p1"] = pv(pprev, od, oc)
        mf["s0"], mf["s1"] = sm(pprev, ld_, lc)
        ex = [f"v_exp_f32 v{sb+r}, v{sb+r}" for r in range(16)]
        cv = [f"v_cvt_pk_bf16_f32 v{pb+d}, v{sb+2*d}, v{sb+2*d+1}" for d in range(8)]
        ph = (t + 2) % 4
        ne = nc = 0
        prev = None
        for tok in sched:
            if tok == "W":
                k("s_waitcnt lgkmcnt(2)")
            elif tok in mf:
                k(mf[tok])
            elif tok == "e":
                k(ex[ne]); ne += 1
            elif tok == "c":
                assert ne >= 2 * nc + 2 and not (prev == "e" and ne == 2 * nc + 2), "cvt too early"
                k(cv[nc]); nc += 1
            elif tok == "n":
                k("s_nop 0")
            elif tok == "K":
                if ph == 0:
                    k(f"v_add_u32 v{VK}, {STG}, v{VK}")
                    k(f"v_and_b32 v{VK}, {R*STG-1}, v{VK}")
                    k("s_barrier")
                if prio and (ph == 0 or prio[ph] != prio[ph - 1]):
                    k(f"s_setprio {prio[ph]}")
                emit(kread(VK, ph))
            elif tok == "V":
                if t % 4 == 0:
                    k(f"v_add_u32 v{VV}, {STG}, v{VV}")
                    k(f"v_and_b32 v{VV}, {R*STG-1}, v{VV}")
                emit(vread(VV, t % 4))
            prev = tok
    k(f"s_add_u32 s{IT}, s{IT}, 1")
    k(f"s_branch {loop}")

    k.label(tail)
    tick(k, 4)
    k("s_waitcnt lgkmcnt(0)")
    emit(sm(Pr(1), Lr(0), Lr(0)) + pv(Pr(1), Or(0), Or(0)))
    k(f"s_add_u32 s{SGB}, s{SGB}, {STG}")
    k(f"s_and_b32 s{SGB}, s{SGB}, {R*STG-1}")
    k(f"s_mov_b32 s{IT}, 8")
    k("s_nop 2")
    k(f"v_cmp_nge_f32 vcc, s{THS}, v{Lr(0)}")
    k(f"s_cbranch_vccnz {slow[1]}")
    fin = k.newlabel("fin")
    k.label(fin)
    k(f"v_rcp_f32 v{T0}, v{Lr(0)}")
    k("s_nop 1")
    k(f"v_mul_f32 v{T0}, {hex(f2i(1.0/VSCALE))}, v{T0}")
    k("s_nop 0")
    for r in range(0, 16, 2):
        k(f"v_pk_mul_f32 {v(Or(0)+r,2)}, {v(Or(0)+r,2)}, {v(T0,2)} op_sel_hi:[1,0]")
    for d in range(8):
        k(f"v_cvt_pk_bf16_f32 v{Pr(0)+d}, v{Or(0)+2*d}, v{Or(0)+2*d+1}")
    k(f"buffer_store_dwordx4 {v(Pr(0),4)}, v{VL}, s[12:15], s30 offen{STF}")
    k(f"buffer_store_dwordx4 {v(Pr(0)+4,4)}, v{VL}, s[12:15], s31 offen{STF}")
    tick(k, 5)
    flush(k, 16, WV, 0)
    flush(k, 16, WV, 7, role=1)
    k("s_endpgm")

    for g in range(2):
        k.label(slow[g])
        k("s_waitcnt lgkmcnt(0)")
        k("s_nop 15")
        od, ld_ = Or(1 - g), Lr(1 - g)
        for r in range(16):
            k(f"v_mov_b32 v{od+r}, v{Or(g)+r}")
        for r in range(4):
            k(f"v_mov_b32 v{ld_+r}, v{Lr(g)+r}")
        k(f"s_sub_u32 s35, s{SGB}, {STG}")
        k(f"s_and_b32 s35, s35, {R*STG-1}")
        k(f"v_add_u32 v{VK}, s35, v{VL}")
        k("s_mov_b32 s36, 0")
        sl = k.newlabel("sl")
        k.label(sl)
        emit(kread(VK, 0) + vread(VK, 0))
        k("s_waitcnt lgkmcnt(0)")
        emit(qk(Sr(0), "0"))
        k("s_nop 15")
        tilemax(Sr(0), T0)
        k(f"v_add_f32 v{T0}, {hex(f2i(OFFS))}, v{T0}")
        k(f"v_max_f32 v{T0}, v{T0}, v{M}")
        k(f"v_sub_f32 v{T0+1}, v{M}, v{T0}")
        k(f"v_exp_f32 v{T0+1}, v{T0+1}")
        k(f"v_mov_b32 v{M}, v{T0}")
        for r in range(16):
            k(f"v_sub_f32 v{Sr(0)+r}, v{Sr(0)+r}, v{M}")
        for r in range(16):
            k(f"v_mul_f32 v{od+r}, v{od+r}, v{T0+1}")
        for r in range(4):
            k(f"v_mul_f32 v{ld_+r}, v{ld_+r}, v{T0+1}")
        expcvt(Sr(0), Pr(0))
        k("s_nop 1")
        emit(pv(Pr(0), od, od) + sm(Pr(0), ld_, ld_))
        k("s_nop 15")
        k(f"v_add_u32 v{VK}, 2048, v{VK}")
        k("s_add_u32 s36, s36, 1")
        k("s_cmp_lt_u32 s36, 4")
        k(f"s_cbranch_scc1 {sl}")
        if g == 1:
            k(f"s_cmp_eq_u32 s{IT}, 8")
            k(f"s_cbranch_scc1 {fin}")
        restart()
        k(f"s_branch {entry[1-g]}")

    k.label(helper)
    k("s_setprio 3")
    HQ = 24
    k(f"s_sub_u32 s{HQ}, s{WV}, 8")
    copier, gemv = k.newlabel("copier"), k.newlabel("gemv")
    k(f"s_cmp_ge_u32 s{HQ}, 2")
    k(f"s_cbranch_scc1 {copier}")
    k(f"s_mul_i32 s25, s{HQ}, {WS_V-WS_K}")
    k("s_add_u32 s25, s25, s23")
    k(f"s_add_u32 s25, s25, {WS_K-WS_Q+8192}")
    k(f"s_lshl_b32 s26, s{HQ}, 13")
    k(f"s_add_u32 s26, s26, {STG}")
    k("s_waitcnt lgkmcnt(0)")
    k.srd_off(8, 6, WS_Q, KVSZ)
    k.srd_off(16, 6, 0, WS_SMALL)
    def stage_issue():
        k("s_mov_b32 m0, s26")
        k("s_add_u32 s27, s25, 4096")
        for q in range(4):
            k(f"buffer_load_dwordx4 v{VL}, s[8:11], s25 offen offset:{1024*q} lds")
        k("s_add_u32 m0, s26, 4096")
        k("s_add_u32 s25, s25, 8192")
        for q in range(4):
            k(f"buffer_load_dwordx4 v{VL}, s[8:11], s27 offen offset:{1024*q} lds")
        k(f"s_add_u32 s26, s26, {STG}")
        k(f"s_and_b32 s26, s26, {R*STG-1}")
    k("s_barrier")
    stage_issue()
    stage_issue()
    k("s_mov_b32 s28, 1")
    hl = k.newlabel("hl")
    k.label(hl)
    k("s_waitcnt vmcnt(8)")
    k("s_barrier")
    stage_issue()
    k("s_add_u32 s28, s28, 1")
    k(f"s_cmp_lt_u32 s28, {NSTG-2}")
    k(f"s_cbranch_scc1 {hl}")
    k("s_waitcnt vmcnt(8)")
    k(f"s_branch {gemv}")

    k.label(copier)
    stager2 = k.newlabel("stager2")
    k("v_lshrrev_b32 v5, 3, v0")
    k("v_and_b32 v6, 7, v0")
    k(f"s_cmp_eq_u32 s{HQ}, 3")
    k(f"s_cbranch_scc1 {stager2}")
    k(f"s_load_dwordx2 s[40:41], s[0:1], {KA_W2}")
    k(f"s_load_dwordx2 s[54:55], s[0:1], {KA_X}")
    k(f"s_load_dwordx2 s[62:63], s[0:1], {KA_WO}")
    k(f"s_mul_hi_u32 s43, s2, {hex(-(-(1 << 32) // 14))}")
    k("s_mul_i32 s39, s43, 14")
    k("s_sub_u32 s39, s2, s39")
    k("s_lshl_b32 s39, s39, 19")
    k("s_lshl_b32 s43, s43, 7")
    k("s_add_u32 s27, s39, s43")
    k("s_lshl_b32 s28, s2, 15")
    k("v_bfe_u32 v8, v0, 4, 1")
    k("v_lshlrev_b32 v8, 2, v8")
    k("v_xor_b32 v6, v6, v8")
    k("v_lshlrev_b32 v6, 4, v6")
    k("v_lshl_add_u32 v7, v5, 11, v6")
    k("s_waitcnt lgkmcnt(0)")
    k.srd(8, "s40", "s41", F_ * 2048)
    k.srd_off(48, 6, WS_WT, F_ * 2048)
    k("s_cmp_lt_u32 s2, 224")
    k("s_cselect_b32 s10, s10, 0")
    k("s_cselect_b32 s50, s50, 0")
    k.srd_off(16, 6, 0, WS_SMALL)
    k.srd(32, "s62", "s63", 1024 * 2048)
    k.srd(12, "s54", "s55", ACT_BYTES)
    k("s_lshr_b32 s29, s2, 3")
    k("s_bfe_u32 s30, s2, 0x10002")
    k("s_lshl_b32 s30, s30, 10")
    k("s_lshl_b32 s31, s29, 15")
    k("s_add_u32 s31, s31, s30")
    k("s_lshl_b32 s29, s29, 16")
    k("s_add_u32 s29, s29, s30")
    k("s_and_b32 s30, s2, 3")
    k("s_lshl_b32 s30, s30, 20")
    k("s_add_u32 s31, s31, s30")
    CBUF = lambda st, q: 16 + (st % 4) * 16 + 4 * q
    SINK = 156
    DIST = 3
    outstanding = []
    for st in range(14):
        need = [i for i, tg in enumerate(outstanding) if tg == ("ld", st - DIST)]
        k("s_barrier")
        if need:
            k(f"s_waitcnt vmcnt({len([t_ for t_ in outstanding[max(need)+1:] if t_[0] != 'st'])})")
            for q in range(4):
                k(f"buffer_store_dwordx4 {v(CBUF(st-DIST,q),4)}, v{VL}, s[48:51], s28 offen offset:{1024*q} sc0 sc1")
                outstanding.append(("st", st))
            k("s_add_u32 s28, s28, 4096")
        if st < 8:
            for q in range(4):
                k(f"buffer_load_dwordx4 {v(CBUF(st,q),4)}, v7, s[8:11], s27 offen nt")
                k(f"s_add_u32 s27, s27, {8*2048}")
                outstanding.append(("ld", st))
        elif st < 12:
            for q in range(8):
                k(f"buffer_load_dwordx4 {v(SINK,4)}, v{VL}, s[32:35], s29 offen offset:{2048*(q%2)}")
                if q % 2:
                    k("s_add_u32 s29, s29, 4096")
                outstanding.append(("pf", st))
            for q in range(4):
                k(f"buffer_load_dwordx4 {v(SINK,4)}, v{VL}, s[12:15], s31 offen offset:{2048*(q%2)}")
                if q % 2:
                    k("s_add_u32 s31, s31, 4096")
                outstanding.append(("pf", st))
    k("s_waitcnt vmcnt(0)")
    k(f"s_branch {gemv}")

    k.label(stager2)
    k(f"s_load_dwordx2 s[40:41], s[0:1], {KA_W1}")
    k(f"s_load_dwordx2 s[52:53], s[0:1], {KA_WMOD}")
    k(f"v_mul_u32_u24 v7, {F_*2}, v5")
    k("v_lshl_add_u32 v7, v6, 4, v7")
    k(f"v_mul_u32_u24 v8, {6144*2}, v5")
    k("v_lshl_add_u32 v8, v6, 4, v8")
    k("s_and_b32 s25, s2, 3")
    k("s_lshr_b32 s26, s2, 2")
    k("s_lshl_b32 s26, s26, 7")
    k(f"s_mul_i32 s27, s25, {256*F_*2}")
    k("s_add_u32 s27, s27, s26")
    k(f"s_mul_i32 s28, s25, {256*6144*2}")
    k("s_add_u32 s28, s28, s26")
    k("s_movk_i32 s29, 4096")
    k("s_cmp_ge_u32 s2, 64")
    k("s_cselect_b32 s29, 8192, s29")
    k("s_add_u32 s28, s28, s29")
    k("s_waitcnt lgkmcnt(0)")
    k.srd(8, "s40", "s41", 1024 * F_ * 2)
    k.srd(12, "s52", "s53", 1024 * 6144 * 2)
    k("s_cmp_lt_u32 s2, 224")
    k("s_cselect_b32 s10, s10, 0")
    k("s_cmp_lt_u32 s2, 128")
    k("s_cselect_b32 s14, s14, 0")
    k.srd_off(16, 6, 0, WS_SMALL)
    for st in range(14):
        k("s_barrier")
        if st < 8:
            for q in range(4):
                k(f"s_mov_b32 m0, {GEM + (4*st+q)*1024}")
                k("s_nop 0")
                k(f"buffer_load_dwordx4 v7, s[8:11], s27 offen lds")
                k(f"s_add_u32 s27, s27, {8*F_*2}")
        if 4 <= st < 12:
            for q in range(4):
                k(f"s_mov_b32 m0, {GEM + 32768 + (4*(st-4)+q)*1024}")
                k("s_nop 0")
                k(f"buffer_load_dwordx4 v8, s[12:15], s28 offen nt lds")
                k(f"s_add_u32 s28, s28, {8*6144*2}")
    k("s_waitcnt vmcnt(0)")

    k.label(gemv)
    AF = lambda u: 16 + 64 * u
    BF = lambda u: 48 + 64 * u
    DD = lambda u: 144 + 4 * u
    k("v_lshrrev_b32 v5, 4, v0")
    k("v_lshlrev_b32 v6, 4, v5")
    k("v_and_b32 v8, 1, v0")
    k("v_xor_b32 v8, 1, v8")
    k("v_lshl_add_u32 v9, v8, 11, v6")
    k("s_and_b32 s25, s2, 3")
    k("s_lshl_b32 s26, s25, 9")
    k(f"s_add_u32 s27, s26, {WS_COEFB}")
    k(f"s_add_u32 s26, s26, {WS_SILU}")
    k("s_barrier")
    code_pf(k, o.get("next", "tail_kernel"), 0, 152)
    for j in range(8):
        k(f"buffer_load_dwordx4 {v(AF(0)+4*j,4)}, v9, s[16:19], s27 offen offset:{64*j}")
    for j in range(8):
        k(f"buffer_load_dwordx4 {v(AF(1)+4*j,4)}, v6, s[16:19], s26 offen offset:{64*j}")
    k("v_lshlrev_b32 v7, 10, v5")
    k("v_bfe_u32 v8, v0, 2, 2")
    k("v_lshl_add_u32 v7, v8, 7, v7")
    k("v_and_b32 v8, 3, v0")
    k("v_lshl_add_u32 v7, v8, 3, v7")
    k(f"s_lshl_b32 s27, s{HQ}, 5")
    k(f"s_add_u32 s27, s27, {GEM}")
    k("v_add_u32 v7, s27, v7")
    for u in range(2):
        for j in range(8):
            for t_ in range(2):
                k(f"ds_read_b64_tr_b16 {v(BF(u)+4*j+2*t_,2)}, v7 offset:{32768*u+4096*j+512*t_}")
            if j % 4 == 3:
                k("s_waitcnt lgkmcnt(4)")
    for r in range(8):
        k(f"v_mov_b32 v{DD(0)+r}, 0")
    k("s_lshr_b32 s26, s2, 2")
    k("s_lshl_b32 s26, s26, 8")
    k(f"s_lshl_b32 s27, s{HQ}, 6")
    k("s_add_u32 s26, s26, s27")
    k(f"s_mul_i32 s27, s25, {2*F_*4}")
    k("s_add_u32 s27, s27, s26")
    k(f"s_add_u32 s27, s27, {WS_UVP}")
    k(f"s_add_u32 s28, s27, {F_*4}")
    k(f"s_mul_i32 s25, s25, {MPS}")
    k("s_add_u32 s25, s25, s26")
    k(f"s_movk_i32 s29, {2048*4}")
    k("s_cmp_ge_u32 s2, 64")
    k(f"s_cselect_b32 s29, {4096*4}, s29")
    k("s_add_u32 s25, s25, s29")
    k("v_lshlrev_b32 v6, 2, v0")
    k("s_waitcnt vmcnt(0) lgkmcnt(0)")
    k("s_barrier")
    for j in range(8):
        for u in range(2):
            k(f"v_mfma_f32_16x16x32_bf16 {v(DD(u),4)}, {v(AF(u)+4*j,4)}, {v(BF(u)+4*j,4)}, {v(DD(u),4)}")
    k("v_cmp_gt_u32 vcc, 16, v0")
    k("s_nop 7")
    k("s_and_saveexec_b64 s[30:31], vcc")
    k("s_cmp_ge_u32 s2, 224")
    k(f"s_cbranch_scc1 {end}")
    k(f"buffer_store_dword v{DD(0)}, v6, s[16:19], s27 offen{STF}")
    k(f"buffer_store_dword v{DD(0)+1}, v6, s[16:19], s28 offen{STF}")
    k("s_cmp_ge_u32 s2, 128")
    k(f"s_cbranch_scc1 {end}")
    k(f"buffer_store_dword v{DD(1)}, v6, s[16:19], s25 offen{STF}")
    k.label(end)
    k("s_endpgm")
    return k


def kernels(o=None):
    o = o or {}
    return [gen_mod("mod_kernel", o.get("mod")), gen_ln("ln_kernel", o.get("ln")),
            gen_chain("qkv_kernel", ["qkv"], o, "attn_kernel"), gen_attn("attn_kernel", o.get("attn")),
            gen_chain("tail_kernel", ["wo", "w1", "w2"], o)]


def build():
    ks = kernels()
    return assemble_file(ks, ks)


if __name__ == "__main__":
    out = sys.argv[1] if len(sys.argv) > 1 else "adaLN_cond__softmax_full_mha__dense_activation_relu__prompt.s"
    if len(sys.argv) > 2 and sys.argv[2] == "prof":
        PROFILE = True
    open(out, "w").write(build())
    print("wrote", out)
```
